```python
import torch

def _softmax(x, axis=-1):
    return torch.softmax(x, dim=axis)
def _gelu(x):
    return torch.nn.functional.gelu(x, approximate="tanh")
def _silu(x):
    return torch.nn.functional.silu(x)
def _sigmoid(x):
    return torch.sigmoid(x)
def _layernorm(x, axis=-1, eps=1e-5):
    m = x.mean(dim=axis, keepdim=True)
    v = x.var(dim=axis, keepdim=True, unbiased=False)
    return (x - m) / torch.sqrt(v + eps)
def _scatter_add(tgt, idx, src, axis=0):
    return tgt.clone().index_add_(axis, idx, src)
def _segment_sum(src, seg, n):
    out = torch.zeros((n,) + src.shape[1:], dtype=src.dtype)
    return out.index_add_(0, seg, src)
def _pad(x, pw):
    flat = tuple(v for pair in reversed(pw) for v in pair)
    return torch.nn.functional.pad(x, flat)

kernel_name = 'interleave_layers__mha_block_cached__glu_gated_swiglu__decode'

def setup_inputs():

    _w = (lambda a: (lambda t: t.to(torch.bfloat16) if t.is_floating_point() else t)(torch.as_tensor(a)))
    def _A_setup():
        B, Sq, D = 1, 1, 448
        H, Sk, Dh = 16, 32768, 256
        return {
            "x": _w((lambda *s: torch.randn(*s, dtype=torch.bfloat16) * 0.05)(B, Sq, D)),
            "k_cache": _w((lambda *s: torch.randn(*s, dtype=torch.bfloat16) * 1.6)(B, H, Sk, Dh)),
            "v_cache": _w((lambda *s: torch.randn(*s, dtype=torch.bfloat16) * 0.8)(B, H, Sk, Dh)),
            "wq": _w((lambda *s: torch.randn(*s, dtype=torch.bfloat16) * 1.6)(D, H * Dh) * (D ** -0.5)),
            "wo": _w((lambda *s: torch.randn(*s, dtype=torch.bfloat16) * 0.8)(H * Dh, D) * ((H * Dh) ** -0.5)),
        }
    _A_in = _A_setup()

    def _B_setup():
        B, S, D, F = 1, 1, 448, 1792
        return {
            "x": _w((lambda *s: torch.randn(*s, dtype=torch.bfloat16) * 0.05)(B, S, D)),
            "w1": _w((lambda *s: torch.randn(*s, dtype=torch.bfloat16) * 0.4)(D, F) * (2.0 / D) ** 0.5),
            "w3": _w((lambda *s: torch.randn(*s, dtype=torch.bfloat16) * 0.4)(D, F) * (2.0 / D) ** 0.5),
            "w2": _w((lambda *s: torch.randn(*s, dtype=torch.bfloat16) * 0.4)(F, D) * (2.0 / F) ** 0.5),
        }
    _B_in = _B_setup()

    return {
        "A_x": _A_in["x"],
        "A_k_cache": _A_in["k_cache"],
        "A_v_cache": _A_in["v_cache"],
        "A_wq": _A_in["wq"],
        "A_wo": _A_in["wo"],
        "B_x": _B_in["x"],
        "B_w1": _B_in["w1"],
        "B_w3": _B_in["w3"],
        "B_w2": _B_in["w2"],
    }

def reference(A_x, A_k_cache, A_v_cache, A_wq, A_wo, B_x, B_w1, B_w3, B_w2):
    def _A_ref(x, k_cache, v_cache, wq, wo):
        B, Sq, D = x.shape
        H, Dh = 16, 256
        q = (lambda x, *d: x.permute(*d))((x @ wq).reshape(B, Sq, H, Dh), 0, 2, 1, 3)
        scores = torch.einsum("bhqd,bhkd->bhqk", q, k_cache) * (Dh ** -0.5)
        p = _softmax(scores, axis=-1)
        o = torch.einsum("bhqk,bhkd->bhqd", p, v_cache)
        return (lambda x, *d: x.permute(*d))(o, 0, 2, 1, 3).reshape(B, Sq, H * Dh) @ wo

    def _B_ref(x, w1, w3, w2):
        gate = torch.einsum("bsd,df->bsf", x, w1)
        up = torch.einsum("bsd,df->bsf", x, w3)
        h = _silu(gate) * up
        out = torch.einsum("bsf,fd->bsd", h, w2)
        return out

    x = A_x
    x = x + _A_ref(_layernorm(x, axis=-1), A_k_cache, A_v_cache, A_wq, A_wo)
    x = x + _B_ref(_layernorm(x, axis=-1), B_w1, B_w3, B_w2)
    x = x + _A_ref(_layernorm(x, axis=-1), A_k_cache, A_v_cache, A_wq, A_wo)
    x = x + _B_ref(_layernorm(x, axis=-1), B_w1, B_w3, B_w2)
    return x
```

```python
import sys, json

NAME = 'interleave_layers__mha_block_cached__glu_gated_swiglu__decode'

OPT = dict(
    stamps=False,
    nreg=5,
    nlds=2,
    mall='none',
    p2pol='nt',
    p2order='fwd',
    delays=(0, 14, 10, 10, 8),
    spin=1 << 15,
    dump=False,
)

REC = 1152
PART0 = 0
Y0 = PART0 + 2 * 256 * REC
H0 = Y0 + 2 * 16 * 1792
X2P0 = H0 + 2 * 3584
Q20 = X2P0 + 4 * 1792
STAMP0 = Q20 + 16 * 512
DUMP0 = STAMP0 + 256 * 128
WS_BYTES = DUMP0 + (1 << 20)

LDS_BYTES = 163840
SPARE = 131072
WA = SPARE
WB = SPARE + 16384
SCR = SPARE + 30720
V0L = SCR
REDL = SCR + 1024
STATL = SCR + 1536
COMB = WB

V_TID, V_OK, V_OV, V_LRD = 0, 1, 2, 3
V_MASK = 4
V_QB = 8
V_O = 16
V_M, V_MC, V_L, V_S, V_P, V_PPK, V_T, V_XR = 24, 25, 26, 27, 28, 29, 30, 31
V_D = 32
V_X = 48
S_W, S_H, S_SI, S_CLS, S_VV = 3, 4, 5, 6, 7
SRD_K, SRD_V, SRD_WS, SRD_T = 's[8:11]', 's[12:15]', 's[16:19]', 's[20:23]'
P_X, P_WQ, P_WO, P_W1, P_W3, P_W2, P_OUT, P_DBG = 24, 26, 28, 30, 32, 34, 36, 38
S_PB0, S_CS, S_PB1, S_LB, S_SPIN = 52, 53, 54, 55, 56
LOG2E = 1.4426950408889634


def f2u(x):
    import struct
    return struct.unpack('<I', struct.pack('<f', x))[0]


def tile_reg(i):
    return ('v', 64 + 32 * i) if i < 6 else ('a', 32 * (i - 6))


def unit(ti, t, half):
    f, b = tile_reg(ti)
    r = b + (2 * t + half) * 4
    return f'{f}[{r}:{r + 3}]'


class Gen:
    def __init__(self, opt):
        self.o = opt
        self.lines = []
        self.vmq = []
        self.nlab = 0
        self.nstamp = 0
        self.stamp_names = []
        self.THR = 54

    def e(self, s):
        self.lines.append('    ' + s)

    def lab(self, s):
        self.lines.append(s + ':')

    def c(self, s):
        self.lines.append('    ; ' + s)

    def newlab(self, p='L'):
        self.nlab += 1
        return f'{p}_{self.nlab}'

    def vm(self, instr, tag):
        if len(self.vmq) >= self.THR:
            n = self.THR - 4
            self.e(f's_waitcnt vmcnt({n})')
            self.vmq = self.vmq[len(self.vmq) - n:]
        self.e(instr)
        self.vmq.append(tag)

    def wait(self, tag):
        idx = [i for i, t in enumerate(self.vmq) if t == tag]
        if not idx:
            return
        n = len(self.vmq) - 1 - idx[-1]
        self.e(f's_waitcnt vmcnt({n})')
        self.vmq = self.vmq[idx[-1] + 1:]

    def wait_all(self):
        self.e('s_waitcnt vmcnt(0)')
        self.vmq = []

    def stamp(self, name=''):
        if not self.o['stamps']:
            return
        k = self.nstamp
        assert k < 20, 'too many stamps'
        self.nstamp += 1
        self.stamp_names.append(name)
        self.c(f'stamp {k} {name}')
        self.e('s_memrealtime s[58:59]')
        self.e('s_waitcnt lgkmcnt(0)')
        self.e(f's_mov_b32 s{80 + k}, s58')

    def srd(self, dst, ptr, nbytes, add=None):
        if add is None:
            self.e(f's_mov_b32 s{dst}, s{ptr}')
            self.e(f's_and_b32 s{dst + 1}, s{ptr + 1}, 0xffff')
        else:
            self.e(f's_add_u32 s{dst}, s{ptr}, s{add}')
            self.e(f's_addc_u32 s{dst + 1}, s{ptr + 1}, 0')
            self.e(f's_and_b32 s{dst + 1}, s{dst + 1}, 0xffff')
        self.e(f's_mov_b32 s{dst + 2}, {nbytes}')
        self.e(f's_mov_b32 s{dst + 3}, 0x20000')

    def rbf(self, dst, src, tmp=None):
        self.e(f'v_cvt_pk_bf16_f32 v{dst}, v{src}, v{src}')
        self.e(f'v_and_b32 v{dst}, 0xffff0000, v{dst}')

    def row_reduce(self, op, v, nops=True):
        ins = {'add': 'v_add_f32_dpp', 'max': 'v_max_f32_dpp'}[op]
        for ctl in ('quad_perm:[1,0,3,2]', 'quad_perm:[2,3,0,1]', 'row_half_mirror', 'row_mirror'):
            self.e('s_nop 1')
            self.e(f'{ins} v{v}, v{v}, v{v} {ctl} row_mask:0xf bank_mask:0xf')

    def cross_row(self, op, v):
        ins = {'add': 'v_add_f32', 'max': 'v_max_f32'}[op]
        self.e('s_nop 1')
        for i in range(4):
            self.e(f'v_readlane_b32 s{40 + i}, v{v}, {16 * i}')
        self.e('s_nop 1')
        self.e(f'v_mov_b32 v{v}, s40')
        for i in range(1, 4):
            self.e(f'{ins} v{v}, s{40 + i}, v{v}')

    def wave_reduce(self, op, v):
        self.row_reduce(op, v)
        self.cross_row(op, v)

    def soff_step(self, step):
        pb = S_PB1 if ((step >> 2) & 1) else S_PB0
        self.e(f's_add_u32 s44, s{pb}, {step * 524288}')
        self.e('s_add_u32 s45, s44, 4096')

    def load_tile_reg(self, kind, step, ti, pol, tag):
        srd = SRD_K if kind == 'K' else SRD_V
        vo = V_OK if kind == 'K' else V_OV
        self.soff_step(step)
        for t in range(4):
            for half in range(2):
                so = 's44' if t < 2 else 's45'
                imm = (t & 1) * 2048 + half * 256
                self.vm(f'buffer_load_dwordx4 {unit(ti, t, half)}, v{vo}, {srd}, {so} offen offset:{imm} {pol}'.rstrip(), tag)

    def load_tile_lds(self, kind, step, slot, pol, tag):
        srd = SRD_K if kind == 'K' else SRD_V
        vo = V_OK if kind == 'K' else V_OV
        self.soff_step(step)
        for t in range(4):
            for half in range(2):
                u = 2 * t + half
                self.e(f's_add_u32 m0, s{S_LB}, {slot * 8192 + u * 1024}')
                self.e(f's_add_u32 s45, s44, {t * 2048 + half * 256}')
                self.vm(f'buffer_load_dwordx4 v{vo}, {srd}, s45 offen {pol} lds', tag)

    def qk_mfma(self, src):
        if src[0] == 'reg':
            ti = src[1]
            for half in range(2):
                for t in range(4):
                    d = V_D + 4 * t
                    cc = '0' if half == 0 else f'v[{d}:{d + 3}]'
                    q = V_QB + 4 * half
                    self.e(f'v_mfma_f32_16x16x32_bf16 v[{d}:{d + 3}], {unit(ti, t, half)}, v[{q}:{q + 3}], {cc}')
        else:
            slot = src[1]
            for tp in range(2):
                for k in range(4):
                    u = tp * 4 + k
                    self.e(f'ds_read_b128 v[{V_X + 4 * k}:{V_X + 4 * k + 3}], v{V_LRD} offset:{slot * 8192 + u * 1024}')
                for k in range(4):
                    t = tp * 2 + k // 2
                    half = k & 1
                    self.e(f's_waitcnt lgkmcnt({3 - k})')
                    d = V_D + 4 * t
                    cc = '0' if half == 0 else f'v[{d}:{d + 3}]'
                    q = V_QB + 4 * half
                    self.e(f'v_mfma_f32_16x16x32_bf16 v[{d}:{d + 3}], v[{V_X + 4 * k}:{V_X + 4 * k + 3}], v[{q}:{q + 3}], {cc}')

    def reduce_softmax(self, pad):
        if pad > 0:
            self.e(f's_nop {pad - 1}')
        qp = ['[0,0,0,0]', '[1,1,1,1]', '[2,2,2,2]', '[3,3,3,3]']
        for t in range(4):
            d = V_D + 4 * t
            self.e(f'v_mov_b32_dpp v{d}, v{d} quad_perm:{qp[0]} row_mask:0xf bank_mask:0xf')
        for r in (1, 2):
            for t in range(4):
                d = V_D + 4 * t
                self.e(f'v_add_f32_dpp v{d}, v{d + r}, v{d} quad_perm:{qp[r]} row_mask:0xf bank_mask:0xf')
        for t in range(4):
            d = V_D + 4 * t
            self.e(f'v_add_f32_dpp v{V_S}, v{d + 3}, v{d} quad_perm:{qp[3]} row_mask:0xf bank_mask:{1 << t:#x}')
        self.e(f'v_cvt_pk_bf16_f32 v{V_S}, v{V_S}, v{V_S}')
        self.e(f'v_and_b32 v{V_S}, 0xffff0000, v{V_S}')
        self.e(f'v_cmp_gt_f32 vcc, v{V_S}, v{V_M}')
        sk = self.newlab('SK')
        self.e(f's_cbranch_vccz {sk}')
        self.e('s_swappc_b64 s[50:51], s[48:49]')
        self.lab(sk)
        self.e(f'v_fma_f32 v{V_P}, v{V_S}, s{S_CS}, -v{V_MC}')
        self.e(f'v_exp_f32 v{V_P}, v{V_P}')
        self.e('s_nop 0')
        self.e(f'v_add_f32 v{V_L}, v{V_L}, v{V_P}')
        self.e(f'v_cvt_pk_bf16_f32 v{V_PPK}, v{V_P}, v{V_P}')
        self.e('s_nop 1')

    def pv(self, src, ppk=V_PPK):
        def build(t):
            a = V_D + 4 * (t & 1)
            for k in range(4):
                self.e(f'v_and_b32_dpp v{a + k}, v{ppk}, v{V_MASK + k} row_newbcast:{4 * t} row_mask:0xf bank_mask:0xf')

        def mf(t, b0, b1):
            a = V_D + 4 * (t & 1)
            self.e(f'v_mfma_f32_16x16x32_bf16 v[{V_O}:{V_O + 3}], v[{a}:{a + 3}], {b0}, v[{V_O}:{V_O + 3}]')
            self.e(f'v_mfma_f32_16x16x32_bf16 v[{V_O + 4}:{V_O + 7}], v[{a}:{a + 3}], {b1}, v[{V_O + 4}:{V_O + 7}]')
        if src[0] == 'reg':
            ti = src[1]
            build(0)
            build(1)
            for t in range(4):
                mf(t, unit(ti, t, 0), unit(ti, t, 1))
                if t + 2 < 4:
                    build(t + 2)
                    if t + 2 == 3:
                        pass
        else:
            slot = src[1]
            for tp in range(2):
                for k in range(4):
                    u = tp * 4 + k
                    self.e(f'ds_read_b128 v[{V_X + 4 * k}:{V_X + 4 * k + 3}], v{V_LRD} offset:{slot * 8192 + u * 1024}')
                build(2 * tp)
                build(2 * tp + 1)
                self.e('s_waitcnt lgkmcnt(2)')
                mf(2 * tp, f'v[{V_X}:{V_X + 3}]', f'v[{V_X + 4}:{V_X + 7}]')
                self.e('s_waitcnt lgkmcnt(0)')
                mf(2 * tp + 1, f'v[{V_X + 8}:{V_X + 11}]', f'v[{V_X + 12}:{V_X + 15}]')

    def slow_routine(self):
        self.lab('SLOW')
        self.e(f'v_mov_b32 v{V_T}, v{V_S}')
        self.e('s_nop 1')
        self.e(f'v_max_f32_dpp v{V_T}, v{V_T}, v{V_T} row_ror:4 row_mask:0xf bank_mask:0xf')
        self.e('s_nop 1')
        self.e(f'v_max_f32_dpp v{V_T}, v{V_T}, v{V_T} row_ror:8 row_mask:0xf bank_mask:0xf')
        self.cross_row('max', V_T)
        self.e(f'v_max_f32 v{V_M}, v{V_M}, v{V_T}')
        self.e(f'v_mul_f32 v{V_T}, s{S_CS}, v{V_M}')
        self.e(f'v_sub_f32 v{V_P}, v{V_MC}, v{V_T}')
        self.e(f'v_exp_f32 v{V_P}, v{V_P}')
        self.e(f'v_mov_b32 v{V_MC}, v{V_T}')
        self.e('s_nop 7')
        for i in range(8):
            self.e(f'v_mul_f32 v{V_O + i}, v{V_O + i}, v{V_P}')
        self.e(f'v_mul_f32 v{V_L}, v{V_L}, v{V_P}')
        self.e('s_setpc_b64 s[50:51]')

    def init_softmax(self):
        self.e(f'v_mov_b32 v{V_M}, 0xff7fffff')
        self.e(f'v_mul_f32 v{V_MC}, s{S_CS}, v{V_M}')
        self.e(f'v_mov_b32 v{V_L}, 0')
        for i in range(8):
            self.e(f'v_mov_b32 v{V_O + i}, 0')

    def poll(self, issue, regs, delay, name):
        if delay:
            self.e(f's_sleep {delay}')
        lp = self.newlab('PL')
        dn = self.newlab('PD')
        self.e(f's_mov_b32 s{S_SPIN}, 0')
        self.lab(lp)
        issue()
        self.e('s_waitcnt vmcnt(0)')
        t = V_T
        rs = list(regs)
        self.e(f'v_max_u32 v{t}, v{rs[0]}, v{rs[1]}' if len(rs) > 1 else f'v_mov_b32 v{t}, v{rs[0]}')
        rs = rs[2:]
        while len(rs) >= 2:
            self.e(f'v_max3_u32 v{t}, v{rs[0]}, v{rs[1]}, v{t}')
            rs = rs[2:]
        if rs:
            self.e(f'v_max_u32 v{t}, v{rs[0]}, v{t}')
        self.e(f'v_cmp_eq_u32 vcc, -1, v{t}')
        self.e(f's_cbranch_vccz {dn}')
        self.e(f's_add_u32 s{S_SPIN}, s{S_SPIN}, 1')
        self.e(f's_cmp_lt_u32 s{S_SPIN}, {self.o["spin"]}')
        self.e('s_sleep 2')
        self.e(f's_cbranch_scc1 {lp}')
        self.lab(dn)
        self.vmq = []

    def dma_rows(self, ptr, nbytes_total, row_stride, row0_sgpr_expr, rows_per_unit, bytes_per_row, col_off_s, lds_s, nunits, tag, skip_tail=None):
        lpr = bytes_per_row // 16
        self.srd(20, ptr, nbytes_total)
        v = V_T
        self.e(f'v_and_b32 v{v}, 63, v{V_TID}')
        if lpr == 1:
            self.e(f's_mov_b32 s57, {row_stride}')
            self.e(f'v_mul_lo_u32 v{v}, v{v}, s57')
        else:
            sh = lpr.bit_length() - 1
            self.e(f'v_lshrrev_b32 v{V_P}, {sh}, v{v}')
            self.e(f'v_and_b32 v{v}, {lpr - 1}, v{v}')
            self.e(f'v_lshlrev_b32 v{v}, 4, v{v}')
            self.e(f's_mov_b32 s57, {row_stride}')
            self.e(f'v_mul_lo_u32 v{V_P}, v{V_P}, s57')
            self.e(f'v_add_u32 v{v}, v{v}, v{V_P}')
        for u in range(nunits):
            sk = None
            if skip_tail is not None and u >= skip_tail:
                sk = True
            if sk and u == skip_tail:
                self._dma_skip = self.newlab('DS')
                self.e(f's_cmp_eq_u32 s{S_W}, 3')
                self.e(f's_cbranch_scc1 {self._dma_skip}')
            self.e(f's_add_u32 m0, s47, {u * 1024}')
            self.e(f's_add_u32 s57, s46, {u * rows_per_unit * row_stride}')
            instr = f'buffer_load_dwordx4 v{v}, {SRD_T}, s57 offen lds'
            if sk:
                self.e(instr)
            else:
                self.vm(instr, tag)
        if skip_tail is not None and skip_tail < nunits:
            self.lab(self._dma_skip)

    def load_w_s2(self, lds_base_const, tag):
        self.c('S2 weights (wo slice)')
        self.e(f's_lshl_b32 s46, s{S_H}, 8')
        self.e(f's_lshl_b32 s57, s{S_W}, 6')
        self.e('s_add_u32 s46, s46, s57')
        self.e('s_mul_i32 s46, s46, 896')
        self.e(f's_min_u32 s57, s{S_SI}, 13')
        self.e('s_lshl_b32 s57, s57, 6')
        self.e('s_add_u32 s46, s46, s57')
        self.lds_dest(lds_base_const)
        self.dma_rows(P_WO, 4096 * 896, 896, None, 16, 64, None, None, 4, tag)

    def lds_dest(self, base):
        kind, cst = base
        if kind == 'spare':
            self.e(f's_lshl_b32 s47, s{S_W}, 12')
            self.e(f's_add_u32 s47, s47, {cst}')
        else:
            self.e(f's_add_u32 s47, s{S_LB}, {cst}')

    def load_w_s3(self, base, tag):
        self.c('S3 weights (w1/w3 slices)')
        for mi, ptr in enumerate((P_W1, P_W3)):
            self.e(f's_lshl_b32 s46, s{S_W}, 7')
            self.e('s_mul_i32 s46, s46, 3584')
            self.e('s_min_u32 s57, s2, 223')
            self.e('s_lshl_b32 s57, s57, 4')
            self.e('s_add_u32 s46, s46, s57')
            self.lds_dest(base)
            if mi == 1:
                self.e(f's_cmp_eq_u32 s{S_W}, 3')
                self.e('s_cselect_b32 s57, 1, 2')
                self.e('s_lshl_b32 s57, s57, 10')
                self.e('s_add_u32 s47, s47, s57')
            self.dma_rows(ptr, 448 * 3584, 3584, None, 64, 16, None, None, 2, tag, skip_tail=1)

    def load_w_s4mid(self, base, tag):
        self.c('S4 (mid) weights (w2 slice)')
        self.e('s_min_u32 s58, s2, 223')
        self.e('s_and_b32 s46, s58, 3')
        self.e('s_mul_i32 s46, s46, 448')
        self.e(f's_lshl_b32 s57, s{S_W}, 7')
        self.e('s_add_u32 s46, s46, s57')
        self.e('s_mul_i32 s46, s46, 896')
        self.e('s_lshr_b32 s57, s58, 2')
        self.e('s_lshl_b32 s57, s57, 4')
        self.e('s_add_u32 s46, s46, s57')
        self.lds_dest(base)
        self.dma_rows(P_W2, 1792 * 896, 896, None, 64, 16, None, None, 2, tag, skip_tail=1)

    def load_w_s4tail(self, base, tag):
        self.c('S4 (tail) weights (w2 slice)')
        self.e(f's_mul_i32 s46, s{S_W}, {448 * 896}')
        self.e('s_min_u32 s57, s2, 55')
        self.e('s_lshl_b32 s57, s57, 4')
        self.e('s_add_u32 s46, s46, s57')
        self.lds_dest(base)
        self.dma_rows(P_W2, 1792 * 896, 896, None, 64, 16, None, None, 7, tag)

    def load_w_s5(self, base, tag):
        self.c('S5 weights (wq slice)')
        self.e(f's_lshl_b32 s46, s{S_W}, 7')
        self.e('s_mul_i32 s46, s46, 8192')
        self.e(f's_lshl_b32 s57, s{S_H}, 9')
        self.e('s_add_u32 s46, s46, s57')
        self.e(f's_lshl_b32 s57, s{S_SI}, 5')
        self.e('s_add_u32 s46, s46, s57')
        self.lds_dest(base)
        self.dma_rows(P_WQ, 448 * 8192, 8192, None, 32, 32, None, None, 4, tag, skip_tail=2)

    def lds_wave_addr(self, v, base):
        self.lds_dest(base)
        self.e(f'v_mov_b32 v{v}, s47')

    def tr_addr(self, v, base, pitch, mode):
        t1, t2 = V_T, V_P
        self.lds_dest(base)
        self.e(f'v_and_b32 v{t1}, 63, v{V_TID}')
        self.e(f'v_lshrrev_b32 v{t2}, 4, v{t1}')
        self.e(f'v_bfe_u32 v{v}, v{t1}, 2, 2')
        self.e(f'v_lshl_add_u32 v{v}, v{t2}, 3, v{v}')
        self.e(f'v_mul_u32_u24 v{v}, {pitch}, v{v}')
        if mode == 'full':
            self.e(f'v_and_b32 v{t2}, 3, v{t1}')
            self.e(f'v_lshl_add_u32 v{v}, v{t2}, 3, v{v}')
        elif mode == 'dup8':
            self.e(f'v_and_b32 v{t2}, 1, v{t1}')
            self.e(f'v_lshl_add_u32 v{v}, v{t2}, 3, v{v}')
        elif mode == 'two8':
            self.e(f'v_and_b32 v{t2}, 1, v{t1}')
            self.e(f'v_lshl_add_u32 v{v}, v{t2}, 3, v{v}')
            self.e(f's_cmp_eq_u32 s{S_W}, 3')
            self.e('s_cselect_b32 s57, 1, 2')
            self.e('s_lshl_b32 s57, s57, 10')
            self.e(f'v_bfe_u32 v{t2}, v{t1}, 1, 1')
            self.e(f'v_mul_lo_u32 v{t2}, v{t2}, s57')
            self.e(f'v_add_u32 v{v}, v{v}, v{t2}')
        self.e(f'v_add_u32 v{v}, s47, v{v}')

    def gemv_x_stage(self, wbase, pitch, mode, ones):
        va, vb = 36, 37
        self.tr_addr(vb, wbase, pitch, mode)
        self.e(f'v_and_b32 v{va}, 63, v{V_TID}')
        self.e(f'v_lshrrev_b32 v{va}, 4, v{va}')
        self.e(f'v_lshlrev_b32 v{va}, 4, v{va}')
        self.e(f's_lshl_b32 s57, s{S_W}, 8')
        self.e(f's_add_u32 s57, s57, {V0L}')
        self.e(f'v_add_u32 v{va}, s57, v{va}')
        if ones:
            self.e(f'v_and_b32 v{V_T}, 15, v{V_TID}')
            self.e(f'v_cmp_eq_u32 s[62:63], 1, v{V_T}')
            self.e('v_mov_b32 v38, 0x3f803f80')
        for i in range(4):
            self.e(f'v_mov_b32 v{32 + i}, 0')
        sk = self.newlab('GK')
        for kb in range(4):
            if kb == 2:
                self.e(f's_cmp_eq_u32 s{S_W}, 3')
                self.e(f's_cbranch_scc1 {sk}')
            a = 40 + 4 * (kb & 1) * 0
            self.e(f'ds_read_b128 v[40:43], v{va} offset:{kb * 64}')
            self.e(f'ds_read_b64_tr_b16 v[44:45], v{vb} offset:{kb * 32 * pitch}')
            self.e(f'ds_read_b64_tr_b16 v[46:47], v{vb} offset:{kb * 32 * pitch + 4 * pitch}')
            self.e('s_waitcnt lgkmcnt(0)')
            if ones:
                for i in range(4):
                    self.e(f'v_cndmask_b32 v{40 + i}, v{40 + i}, v38, s[62:63]')
                self.e('s_nop 1')
            self.e('v_mfma_f32_16x16x32_bf16 v[32:35], v[40:43], v[44:47], v[32:35]')
        self.lab(sk)
        self.e('s_nop 7')
        self.red_write()

    def red_write(self):
        self.e(f'v_and_b32 v{V_T}, 63, v{V_TID}')
        self.e(f'v_cmp_gt_u32 vcc, 16, v{V_T}')
        self.e(f's_lshl_b32 s57, s{S_W}, 7')
        self.e(f's_add_u32 s57, s57, {REDL}')
        self.e(f'v_lshlrev_b32 v{V_T}, 3, v{V_T}')
        self.e(f'v_add_u32 v{V_T}, s57, v{V_T}')
        self.e('s_and_saveexec_b64 s[60:61], vcc')
        self.e(f'ds_write_b64 v{V_T}, v[32:33]')
        self.e('s_mov_b64 exec, s[60:61]')

    def red_read(self):
        self.e(f'v_and_b32 v{V_T}, 15, v{V_TID}')
        self.e(f'v_lshlrev_b32 v{V_T}, 3, v{V_T}')
        self.e(f'v_add_u32 v{V_T}, {REDL}, v{V_T}')
        for w in range(4):
            self.e(f'ds_read_b64 v[{32 + 2 * w}:{33 + 2 * w}], v{V_T} offset:{128 * w}')
        self.e('s_waitcnt lgkmcnt(0)')
        self.e('v_add_f32 v32, v32, v34')
        self.e('v_add_f32 v36, v36, v38')
        self.e('v_add_f32 v33, v33, v35')
        self.e('v_add_f32 v37, v37, v39')
        self.e('v_add_f32 v32, v32, v36')
        self.e('v_add_f32 v33, v33, v37')

    def x_update_and_stats(self, acc_lo, acc_hi):
        a, b = acc_lo, acc_hi
        self.rbf(a, a)
        self.rbf(b, b)
        self.e(f'v_lshlrev_b32 v40, 16, v{V_XR}')
        self.e(f'v_and_b32 v41, 0xffff0000, v{V_XR}')
        self.e(f'v_add_f32 v40, v40, v{a}')
        self.e(f'v_add_f32 v41, v41, v{b}')
        self.e(f'v_cvt_pk_bf16_f32 v{V_XR}, v40, v41')
        self.e(f'v_cmp_gt_u32 vcc, 224, v{V_TID}')
        self.e('s_nop 1')
        self.e(f'v_cndmask_b32 v{V_XR}, 0, v{V_XR}, vcc')
        self.e(f'v_lshlrev_b32 v42, 2, v{V_TID}')
        self.e(f'v_add_u32 v42, {V0L}, v42')
        self.e(f'ds_write_b32 v42, v{V_XR}')
        self.e(f'v_lshlrev_b32 v40, 16, v{V_XR}')
        self.e(f'v_and_b32 v41, 0xffff0000, v{V_XR}')
        self.e('v_add_f32 v43, v40, v41')
        self.e('v_mul_f32 v44, v40, v40')
        self.e('v_fmac_f32 v44, v41, v41')
        self.wave_reduce('add', 43)
        self.wave_reduce('add', 44)
        self.e('v_mov_b32 v46, v43')
        self.e('v_mov_b32 v47, v44')
        self.e(f's_lshl_b32 s57, s{S_W}, 3')
        self.e(f's_add_u32 s57, s57, {STATL}')
        self.e('v_mov_b32 v45, s57')
        self.e('ds_write_b64 v45, v[46:47]')
        self.e('s_waitcnt lgkmcnt(0)')

    def stats_read(self):
        self.e(f'v_mov_b32 v45, {STATL}')
        self.e('ds_read_b128 v[40:43], v45')
        self.e('ds_read_b128 v[44:47], v45 offset:16')
        self.e('s_waitcnt lgkmcnt(0)')
        self.e('v_add_f32 v40, v40, v42')
        self.e('v_add_f32 v44, v44, v46')
        self.e('v_add_f32 v41, v41, v43')
        self.e('v_add_f32 v45, v45, v47')
        self.e('v_add_f32 v40, v40, v44')
        self.e('v_add_f32 v41, v41, v45')
        self.e(f'v_mul_f32 v40, {f2u(1.0 / 448):#x}, v40')
        self.e(f'v_mul_f32 v41, {f2u(1.0 / 448):#x}, v41')
        self.e('v_fma_f32 v41, -v40, v40, v41')
        self.e('v_max_f32 v41, 0, v41')
        self.e(f'v_add_f32 v41, {f2u(1e-5):#x}, v41')
        self.e('v_rsq_f32 v41, v41')
        self.e('s_nop 0')

    def pass_end(self, p):
        self.c(f'---- end of pass {p}: combine waves and publish partial')
        self.wave_l_reduce()
        self.e('s_nop 7')
        self.e(f'v_and_b32 v{V_T}, 63, v{V_TID}')
        self.e(f'v_and_b32 v32, 15, v{V_T}')
        self.e(f'v_lshrrev_b32 v33, 4, v{V_T}')
        self.e('v_lshlrev_b32 v32, 5, v32')
        self.e('v_lshl_add_u32 v32, v33, 4, v32')
        self.e(f's_mul_i32 s57, s{S_W}, 1040')
        self.e(f's_add_u32 s57, s57, {COMB}')
        self.e('v_add_u32 v32, s57, v32')
        self.e(f'v_cmp_gt_u32 vcc, 32, v{V_T}')
        self.e('s_and_saveexec_b64 s[60:61], vcc')
        self.e(f'ds_write_b128 v32, v[{V_O}:{V_O + 3}]')
        self.e(f'ds_write_b128 v32, v[{V_O + 4}:{V_O + 7}] offset:512')
        self.e('s_mov_b64 exec, s[60:61]')
        self.e('v_mov_b32 v32, s57')
        self.e(f'v_mov_b32 v34, v{V_M}')
        self.e(f'v_mov_b32 v35, v{V_L}')
        self.e('ds_write_b64 v32, v[34:35] offset:1024')
        self.e('s_waitcnt lgkmcnt(0)')
        self.e('s_barrier')
        self.e(f'v_lshlrev_b32 v32, 2, v{V_TID}')
        self.e(f'v_mov_b32 v33, {COMB}')
        self.e(f'v_add_u32 v48, {COMB}, v32')
        for w in range(4):
            self.e(f'ds_read_b32 v{36 + w}, v48 offset:{1040 * w}')
            self.e(f'ds_read_b64 v[{40 + 2 * w}:{41 + 2 * w}], v33 offset:{1040 * w + 1024}')
        self.e('s_waitcnt lgkmcnt(0)')
        self.e('v_max_f32 v34, v40, v42')
        self.e('v_max3_f32 v34, v44, v46, v34')
        for w in range(4):
            self.e(f'v_sub_f32 v{40 + 2 * w}, v{40 + 2 * w}, v34')
            self.e(f'v_mul_f32 v{40 + 2 * w}, s{S_CS}, v{40 + 2 * w}')
            self.e(f'v_exp_f32 v{40 + 2 * w}, v{40 + 2 * w}')
        self.e('s_nop 0')
        self.e('v_mul_f32 v36, v36, v40')
        self.e('v_fmac_f32 v36, v37, v42')
        self.e('v_fmac_f32 v36, v38, v44')
        self.e('v_fmac_f32 v36, v39, v46')
        self.e('v_mul_f32 v35, v41, v40')
        self.e('v_fmac_f32 v35, v43, v42')
        self.e('v_fmac_f32 v35, v45, v44')
        self.e('v_fmac_f32 v35, v47, v46')
        self.e(f's_lshl_b32 s57, s{S_H}, 4')
        self.e(f's_add_u32 s57, s57, s{S_SI}')
        self.e(f's_mul_i32 s57, s57, {REC}')
        self.e(f's_add_u32 s57, s57, {PART0 + p * 256 * REC}')
        self.vm(f'buffer_store_dword v36, v32, {SRD_WS}, s57 offen sc1', 'pub')
        self.e(f'v_cmp_eq_u32 vcc, 0, v{V_TID}')
        self.e('s_and_saveexec_b64 s[60:61], vcc')
        zl = self.newlab('PZ')
        self.e(f's_cbranch_execz {zl}')
        self.e('v_mov_b32 v32, 1024')
        self.e(f'buffer_store_dwordx2 v[34:35], v32, {SRD_WS}, s57 offen sc1')
        self.lab(zl)
        self.e('s_mov_b64 exec, s[60:61]')
        self.e('s_barrier')

    def wave_l_reduce(self):
        v = V_L
        self.e('s_nop 1')
        self.e(f'v_add_f32_dpp v{v}, v{v}, v{v} row_ror:4 row_mask:0xf bank_mask:0xf')
        self.e('s_nop 1')
        self.e(f'v_add_f32_dpp v{v}, v{v}, v{v} row_ror:8 row_mask:0xf bank_mask:0xf')
        self.cross_row('add', v)

    def stage_s2(self, p, wbase, after_reads=None):
        self.c(f'---- S2 (pass {p}): combine head partials, o @ wo slice')
        skip = self.newlab('S2X')
        self.e(f's_cmp_ge_u32 s{S_SI}, 14')
        self.e(f's_cbranch_scc1 {skip}')
        self.e(f's_mul_i32 s57, s{S_H}, {16 * REC}')
        self.e(f's_add_u32 s46, s57, {PART0 + p * 256 * REC}')
        self.e(f'v_lshlrev_b32 v8, 2, v{V_TID}')
        self.e(f'v_and_b32 v9, 15, v{V_TID}')
        self.e(f'v_mul_u32_u24 v9, {REC}, v9')
        self.e('v_add_u32 v9, 1024, v9')

        def issue():
            for s in range(16):
                self.e(f's_add_u32 s57, s46, {s * REC}')
                self.e(f'buffer_load_dword v{32 + s}, v8, {SRD_WS}, s57 offen sc1')
            self.e(f'buffer_load_dwordx2 v[48:49], v9, {SRD_WS}, s46 offen sc1')
        self.poll(issue, list(range(32, 50)), self.o['delays'][0], 'hop1')
        self.stamp(f'hop1 done p{p}')
        self.e('v_mov_b32 v50, v48')
        self.row_reduce('max', 50)
        self.e('v_sub_f32 v48, v48, v50')
        self.e(f'v_mul_f32 v48, s{S_CS}, v48')
        self.e('v_exp_f32 v48, v48')
        self.e('s_nop 0')
        self.e('v_mul_f32 v49, v49, v48')
        self.row_reduce('add', 49)
        self.e('v_rcp_f32 v49, v49')
        self.e('s_nop 0')
        self.e('v_mul_f32 v48, v48, v49')
        self.e('s_nop 1')
        for s in range(16):
            self.e(f'v_readlane_b32 s{64 + s}, v48, {s}')
        self.e('s_nop 1')
        self.e('v_mul_f32 v50, s64, v32')
        for s in range(1, 16):
            self.e(f'v_fmac_f32 v50, s{64 + s}, v{32 + s}')
        self.e('v_cvt_pk_bf16_f32 v50, v50, v50')
        self.e(f'v_lshlrev_b32 v51, 1, v{V_TID}')
        self.e(f'v_add_u32 v51, {V0L}, v51')
        self.e(f'ds_write_b16 v51, v50')
        self.wait('wA')
        self.tr_addr(37, wbase, 64, 'full')
        self.e(f'v_and_b32 v36, 63, v{V_TID}')
        self.e('v_lshrrev_b32 v36, 4, v36')
        self.e('v_lshlrev_b32 v36, 4, v36')
        self.e(f's_lshl_b32 s57, s{S_W}, 7')
        self.e(f's_add_u32 s57, s57, {V0L}')
        self.e('v_add_u32 v36, s57, v36')
        self.e('s_waitcnt lgkmcnt(0)')
        self.e('ds_read_b128 v[40:43], v36')
        self.e('ds_read_b128 v[44:47], v36 offset:64')
        for i in range(2):
            for cb in range(2):
                r = 48 + (i * 2 + cb) * 4
                self.e(f'ds_read_b64_tr_b16 v[{r}:{r + 1}], v37 offset:{i * 32 * 64 + cb * 32}')
                self.e(f'ds_read_b64_tr_b16 v[{r + 2}:{r + 3}], v37 offset:{i * 32 * 64 + cb * 32 + 4 * 64}')
        self.e('s_waitcnt lgkmcnt(0)')
        self.e('v_mfma_f32_16x16x32_bf16 v[32:35], v[40:43], v[48:51], 0')
        self.e('v_mfma_f32_16x16x32_bf16 v[8:11], v[40:43], v[52:55], 0')
        self.e('v_mfma_f32_16x16x32_bf16 v[32:35], v[44:47], v[56:59], v[32:35]')
        self.e('v_mfma_f32_16x16x32_bf16 v[8:11], v[44:47], v[60:63], v[8:11]')
        self.e('s_nop 7')
        self.e('v_mov_b32 v33, v8')
        self.red_write()
        self.e('s_waitcnt lgkmcnt(0)')
        self.e('s_barrier')
        self.e(f's_cmp_lg_u32 s{S_W}, 0')
        self.e(f's_cbranch_scc1 {skip}')
        self.red_read()
        self.e(f'v_and_b32 v{V_T}, 63, v{V_TID}')
        self.e(f'v_cmp_gt_u32 vcc, 16, v{V_T}')
        self.e('s_nop 1')
        self.e('v_cndmask_b32 v32, v33, v32, vcc')
        self.e(f'v_cmp_gt_u32 vcc, 32, v{V_TID}')
        self.e('s_and_saveexec_b64 s[60:61], vcc')
        zl = self.newlab('YZ')
        self.e(f's_cbranch_execz {zl}')
        self.e(f's_mul_i32 s57, s{S_H}, 1792')
        self.e(f's_lshl_b32 s58, s{S_SI}, 7')
        self.e('s_add_u32 s57, s57, s58')
        self.e(f's_add_u32 s57, s57, {Y0 + p * 16 * 1792}')
        self.e(f'v_lshlrev_b32 v34, 2, v{V_TID}')
        self.e(f'buffer_store_dword v32, v34, {SRD_WS}, s57 offen sc1')
        self.lab(zl)
        self.e('s_mov_b64 exec, s[60:61]')
        self.lab(skip)

    def stage_s3(self, p, wbase):
        self.c(f'---- S3 (pass {p}): x1, LN, gate/up, h')
        self.e(f'v_min_u32 v8, 223, v{V_TID}')
        self.e('v_lshlrev_b32 v8, 3, v8')

        def issue():
            for h in range(16):
                self.e(f's_mov_b32 s57, {Y0 + p * 16 * 1792 + h * 1792}')
                self.e(f'buffer_load_dwordx2 v[{32 + 2 * h}:{33 + 2 * h}], v8, {SRD_WS}, s57 offen sc1')
        self.poll(issue, list(range(32, 64)), self.o['delays'][1], 'hop2')
        self.stamp(f'hop2 done p{p}')
        for st in (16, 8, 4, 2):
            for i in range(0, st, 2):
                self.e(f'v_add_f32 v{32 + i}, v{32 + i}, v{32 + i + st}')
                self.e(f'v_add_f32 v{33 + i}, v{33 + i}, v{33 + i + st}')
        self.x_update_and_stats(32, 33)
        skip = self.newlab('S3X')
        self.e('s_cmp_ge_u32 s2, 224')
        self.e(f's_cbranch_scc1 {skip}')
        self.wait('wB')
        self.gemv_x_stage(wbase, 16, 'two8', True)
        self.e('s_waitcnt lgkmcnt(0)')
        self.e('s_barrier')
        self.e(f's_cmp_lg_u32 s{S_W}, 0')
        self.e(f's_cbranch_scc1 {skip}')
        self.red_read()
        self.stats_read()
        self.e('v_fma_f32 v32, -v40, v33, v32')
        self.e('v_mul_f32 v32, v32, v41')
        self.rbf(32, 32)
        self.e('s_nop 1')
        self.e('v_mov_b32_dpp v33, v32 row_ror:8 row_mask:0xf bank_mask:0xf')
        self.e(f'v_mul_f32 v34, {f2u(-LOG2E):#x}, v32')
        self.e('v_exp_f32 v34, v34')
        self.e('s_nop 0')
        self.e('v_add_f32 v34, 1.0, v34')
        self.e('v_rcp_f32 v34, v34')
        self.e('s_nop 0')
        self.e('v_mul_f32 v34, v34, v32')
        self.rbf(34, 34)
        self.e('v_mul_f32 v34, v34, v33')
        self.e('s_nop 1')
        self.e('v_mov_b32_dpp v35, v34 quad_perm:[1,0,3,2] row_mask:0xf bank_mask:0xf')
        self.e('v_cvt_pk_bf16_f32 v34, v34, v35')
        self.e(f'v_and_b32 v35, 0xf9, v{V_TID}')
        self.e('v_cmp_eq_u32 vcc, 0, v35')
        self.e('s_and_saveexec_b64 s[60:61], vcc')
        zl = self.newlab('HZ')
        self.e(f's_cbranch_execz {zl}')
        self.e(f'v_lshlrev_b32 v35, 1, v{V_TID}')
        self.e('s_lshl_b32 s57, s2, 4')
        self.e(f's_add_u32 s57, s57, {H0 + p * 3584}')
        self.e(f'buffer_store_dword v34, v35, {SRD_WS}, s57 offen sc1')
        self.lab(zl)
        self.e('s_mov_b64 exec, s[60:61]')
        self.lab(skip)

    def stage_s4(self, p, wbase, tail):
        self.c(f'---- S4 (pass {p})')
        skip = self.newlab('S4X')
        self.e(f's_cmp_ge_u32 s2, {56 if tail else 224}')
        self.e(f's_cbranch_scc1 {skip}')
        nkb = 14 if tail else 4
        self.e(f'v_and_b32 v8, 63, v{V_TID}')
        self.e('v_lshrrev_b32 v8, 4, v8')
        self.e('v_lshlrev_b32 v8, 4, v8')
        if tail:
            self.e(f's_mul_i32 s46, s{S_W}, {448 * 2}')
        else:
            self.e('s_and_b32 s46, s2, 3')
            self.e(f's_mul_i32 s46, s46, {448 * 2}')
            self.e(f's_lshl_b32 s57, s{S_W}, 8')
            self.e('s_add_u32 s46, s46, s57')
        self.e(f's_add_u32 s46, s46, {H0 + p * 3584}')
        abase = 64 if tail else 48
        if not tail:
            self.e(f's_cmp_eq_u32 s{S_W}, 3')
            self.e('s_cselect_b32 s58, 0, 128')

        def issue():
            for kb in range(nkb):
                r = abase + 4 * kb
                if not tail and kb >= 2:
                    self.e(f's_add_u32 s57, s46, s58')
                    self.e(f'buffer_load_dwordx4 v[{r}:{r + 3}], v8, {SRD_WS}, s57 offen offset:{(kb - 2) * 64} sc1')
                else:
                    self.e(f'buffer_load_dwordx4 v[{r}:{r + 3}], v8, {SRD_WS}, s46 offen offset:{kb * 64} sc1')
        if tail:
            self.wait('wC')
        else:
            self.wait('wA2')
        self.poll(issue, list(range(abase, abase + 4 * nkb)), self.o['delays'][2], 'hop3a')
        self.stamp(f'hop3a done p{p}')
        self.tr_addr(37, wbase, 16, 'dup8')
        for i in range(4):
            self.e(f'v_mov_b32 v{32 + i}, 0')
        sk = self.newlab('GK')
        for kb in range(nkb):
            if not tail and kb == 2:
                self.e(f's_cmp_eq_u32 s{S_W}, 3')
                self.e(f's_cbranch_scc1 {sk}')
            r = abase + 4 * kb
            b = 40 + 4 * (kb & 1)
            self.e(f'ds_read_b64_tr_b16 v[{b}:{b + 1}], v37 offset:{kb * 512}')
            self.e(f'ds_read_b64_tr_b16 v[{b + 2}:{b + 3}], v37 offset:{kb * 512 + 64}')
            self.e('s_waitcnt lgkmcnt(0)')
            self.e(f'v_mfma_f32_16x16x32_bf16 v[32:35], v[{r}:{r + 3}], v[{b}:{b + 3}], v[32:35]')
        self.lab(sk)
        self.e('s_nop 7')
        self.red_write()
        self.e('s_waitcnt lgkmcnt(0)')
        self.e('s_barrier')
        self.e(f's_cmp_lg_u32 s{S_W}, 0')
        self.e(f's_cbranch_scc1 {skip}')
        self.red_read()
        if not tail:
            self.e(f'v_cmp_gt_u32 vcc, 8, v{V_TID}')
            self.e('s_and_saveexec_b64 s[60:61], vcc')
            zl = self.newlab('XZ')
            self.e(f's_cbranch_execz {zl}')
            self.e('s_and_b32 s57, s2, 3')
            self.e('s_mul_i32 s57, s57, 1792')
            self.e('s_lshr_b32 s58, s2, 2')
            self.e('s_lshl_b32 s58, s58, 5')
            self.e('s_add_u32 s57, s57, s58')
            self.e(f's_add_u32 s57, s57, {X2P0}')
            self.e(f'v_lshlrev_b32 v34, 2, v{V_TID}')
            self.e(f'buffer_store_dword v32, v34, {SRD_WS}, s57 offen sc1')
            self.lab(zl)
            self.e('s_mov_b64 exec, s[60:61]')
        else:
            self.rbf(32, 32)
            self.e(f'v_and_b32 v34, 7, v{V_TID}')
            self.e('v_lshlrev_b32 v34, 1, v34')
            self.e('s_lshl_b32 s57, s2, 4')
            self.e(f's_add_u32 s57, s57, {V0L}')
            self.e('v_add_u32 v34, s57, v34')
            self.e('ds_read_u16 v35, v34')
            self.e('s_waitcnt lgkmcnt(0)')
            self.e('v_lshlrev_b32 v35, 16, v35')
            self.e('v_add_f32 v32, v32, v35')
            self.e('s_nop 1')
            self.e('v_mov_b32_dpp v35, v32 quad_perm:[1,0,3,2] row_mask:0xf bank_mask:0xf')
            self.e('v_cvt_pk_bf16_f32 v32, v32, v35')
            self.e(f'v_and_b32 v35, 0xf9, v{V_TID}')
            self.e('v_cmp_eq_u32 vcc, 0, v35')
            self.e('s_and_saveexec_b64 s[60:61], vcc')
            zl = self.newlab('OZ')
            self.e(f's_cbranch_execz {zl}')
            self.srd(20, P_OUT, 896)
            self.e(f'v_lshlrev_b32 v35, 1, v{V_TID}')
            self.e('s_lshl_b32 s57, s2, 4')
            self.e(f'buffer_store_dword v32, v35, {SRD_T}, s57 offen')
            self.lab(zl)
            self.e('s_mov_b64 exec, s[60:61]')
        self.lab(skip)

    def stage_s5(self, wbase):
        self.c('---- S5: x2, LN, q2 slice')
        self.e(f'v_min_u32 v8, 223, v{V_TID}')
        self.e('v_lshlrev_b32 v8, 3, v8')

        def issue():
            for k in range(4):
                self.e(f's_mov_b32 s57, {X2P0 + k * 1792}')
                self.e(f'buffer_load_dwordx2 v[{32 + 2 * k}:{33 + 2 * k}], v8, {SRD_WS}, s57 offen sc1')
        self.poll(issue, list(range(32, 40)), self.o['delays'][3], 'hop3b')
        self.stamp('hop3b done')
        self.e('v_add_f32 v32, v32, v34')
        self.e('v_add_f32 v33, v33, v35')
        self.e('v_add_f32 v36, v36, v38')
        self.e('v_add_f32 v37, v37, v39')
        self.e('v_add_f32 v32, v32, v36')
        self.e('v_add_f32 v33, v33, v37')
        self.x_update_and_stats(32, 33)
        self.gemv_x_stage(wbase, 32, 'full', True)
        self.e('s_waitcnt lgkmcnt(0)')
        self.e('s_barrier')
        skip = self.newlab('S5X')
        self.e(f's_cmp_lg_u32 s{S_W}, 0')
        self.e(f's_cbranch_scc1 {skip}')
        self.red_read()
        self.stats_read()
        self.e('v_fma_f32 v32, -v40, v33, v32')
        self.e('v_mul_f32 v32, v32, v41')
        self.e('s_nop 1')
        self.e('v_mov_b32_dpp v33, v32 quad_perm:[1,0,3,2] row_mask:0xf bank_mask:0xf')
        self.e('v_cvt_pk_bf16_f32 v32, v32, v33')
        self.e(f'v_and_b32 v35, 0xf1, v{V_TID}')
        self.e('v_cmp_eq_u32 vcc, 0, v35')
        self.e('s_and_saveexec_b64 s[60:61], vcc')
        zl = self.newlab('QZ')
        self.e(f's_cbranch_execz {zl}')
        self.e(f's_lshl_b32 s57, s{S_H}, 9')
        self.e(f's_lshl_b32 s58, s{S_SI}, 5')
        self.e('s_add_u32 s57, s57, s58')
        self.e(f's_add_u32 s57, s57, {Q20}')
        self.e(f'v_lshlrev_b32 v35, 1, v{V_TID}')
        self.e(f'buffer_store_dword v32, v35, {SRD_WS}, s57 offen sc1')
        self.lab(zl)
        self.e('s_mov_b64 exec, s[60:61]')
        self.lab(skip)

    def qfrag_voff(self, v):
        self.e(f'v_and_b32 v{V_T}, 63, v{V_TID}')
        self.e(f'v_lshrrev_b32 v{v}, 4, v{V_T}')
        self.e(f'v_lshlrev_b32 v{v}, 2, v{v}')
        self.e(f'v_and_b32 v{V_T}, 3, v{V_T}')
        self.e(f'v_add_u32 v{v}, v{v}, v{V_T}')
        self.e(f'v_lshlrev_b32 v{v}, 4, v{v}')

    def stage_s6(self):
        self.c('---- S6: gather q2')
        self.qfrag_voff(32)
        self.e(f's_lshl_b32 s46, s{S_H}, 9')
        self.e(f's_add_u32 s46, s46, {Q20}')

        def issue():
            self.e(f'buffer_load_dwordx4 v[{V_QB}:{V_QB + 3}], v32, {SRD_WS}, s46 offen sc1')
            self.e(f'buffer_load_dwordx4 v[{V_QB + 4}:{V_QB + 7}], v32, {SRD_WS}, s46 offen offset:256 sc1')
        self.poll(issue, list(range(V_QB, V_QB + 8)), self.o['delays'][4], 'hop5')
        self.stamp('hop5 done')

    def step_job(self, ksrc, vsrc, ktag, vtag, nextK=None, nextV=None):
        if ktag:
            self.wait(ktag)
        self.qk_mfma(ksrc)
        pad = 8
        if nextK:
            n0 = len(self.lines)
            nextK()
            pad = max(0, 8 - (len(self.lines) - n0))
        self.reduce_softmax(pad)
        if vtag:
            self.wait(vtag)
        self.pv(vsrc)
        if nextV:
            nextV()

    def build(self):
        o = self.o
        nreg, nlds = o['nreg'], o['nlds']
        e = self.e
        self.lab(f'{NAME}_kernel')
        e('s_cmp_ge_u32 s2, 256')
        e('s_cbranch_scc1 END')
        e('s_load_dwordx16 s[64:79], s[0:1], 0')
        e('s_load_dwordx8 s[80:87], s[0:1], 64')
        e(f'v_lshrrev_b32 v1, 6, v{V_TID}')
        e('s_nop 0')
        e(f'v_readfirstlane_b32 s{S_W}, v1')
        e('s_lshr_b32 s57, s2, 6')
        e(f's_bfe_u32 s{S_VV}, s2, 0x30003')
        e('s_and_b32 s58, s2, 7')
        e(f's_lshr_b32 s{S_CLS}, s58, 2')
        e('s_and_b32 s58, s58, 3')
        e(f's_lshl_b32 s{S_H}, s57, 2')
        e(f's_add_u32 s{S_H}, s{S_H}, s58')
        e(f's_lshl_b32 s{S_SI}, s{S_CLS}, 3')
        e(f's_add_u32 s{S_SI}, s{S_SI}, s{S_VV}')
        e(f's_lshl_b32 s57, s{S_VV}, 2')
        e(f's_add_u32 s57, s57, s{S_W}')
        e('s_lshl_b32 s57, s57, 14')
        e(f's_lshl_b32 s58, s{S_CLS}, 13')
        e(f's_add_u32 s{S_PB0}, s57, s58')
        e('s_xor_b32 s58, s58, 8192')
        e(f's_add_u32 s{S_PB1}, s57, s58')
        e(f's_lshl_b32 s{S_LB}, s{S_W}, 15')
        e(f's_mov_b32 s{S_CS}, {f2u(LOG2E / 16):#x}')
        e(f'v_and_b32 v30, 63, v{V_TID}')
        e('v_lshrrev_b32 v32, 4, v30')
        e('v_bfe_u32 v33, v30, 2, 2')
        e('v_and_b32 v34, 3, v30')
        e('v_and_b32 v35, 15, v30')
        e(f'v_lshlrev_b32 v{V_OK}, 9, v33')
        e(f'v_lshl_add_u32 v{V_OK}, v32, 6, v{V_OK}')
        e(f'v_lshl_add_u32 v{V_OK}, v34, 4, v{V_OK}')
        e(f'v_lshlrev_b32 v{V_OV}, 9, v32')
        e(f'v_lshl_add_u32 v{V_OV}, v35, 4, v{V_OV}')
        e(f'v_lshlrev_b32 v{V_LRD}, 4, v30')
        e(f'v_add_u32 v{V_LRD}, s{S_LB}, v{V_LRD}')
        e('v_and_b32 v36, 1, v35')
        e('v_cmp_eq_u32 vcc, 1, v36')
        e('v_mov_b32 v37, 0x0000ffff')
        e('v_mov_b32 v38, 0xffff0000')
        e('v_cndmask_b32 v36, v37, v38, vcc')
        e('v_lshrrev_b32 v37, 1, v35')
        for k in range(4):
            e(f'v_cmp_eq_u32 vcc, {k}, v37')
            e('s_nop 1')
            e(f'v_cndmask_b32 v{V_MASK + k}, 0, v36, vcc')
        e('s_getpc_b64 s[48:49]')
        self.lab('GPC0')
        e('s_add_u32 s48, s48, SLOW-GPC0')
        e('s_addc_u32 s49, s49, 0')
        e('s_waitcnt lgkmcnt(0)')
        for dst, src in ((P_X, 64), (P_WQ, 70), (P_WO, 72), (P_W1, 76), (P_W3, 78), (P_W2, 80), (P_OUT, 82), (P_DBG, 84)):
            e(f's_mov_b64 s[{dst}:{dst + 1}], s[{src}:{src + 1}]')
        e(f's_lshl_b32 s57, s{S_H}, 24')
        self.srd(8, 66, 1 << 24, add=57)
        self.srd(12, 68, 1 << 24, add=57)
        self.srd(16, 86, WS_BYTES)
        if o['stamps']:
            for k in range(20):
                e(f's_mov_b32 s{80 + k}, 0')
            self.stamp('start')

        self.c('clear hand-off slots')
        e('v_mov_b32 v32, -1')
        e('v_mov_b32 v33, -1')
        e(f'v_lshlrev_b32 v34, 2, v{V_TID}')
        e(f's_lshl_b32 s46, s{S_H}, 4')
        e(f's_add_u32 s46, s46, s{S_SI}')
        e(f's_mul_i32 s46, s46, {REC}')
        for p in range(2):
            e(f's_add_u32 s57, s46, {PART0 + p * 256 * REC}')
            self.vm(f'buffer_store_dword v32, v34, {SRD_WS}, s57 offen sc1', 'clr')
        skc = self.newlab('CL')
        e(f's_cmp_lg_u32 s{S_W}, 0')
        e(f's_cbranch_scc1 {skc}')
        e(f'v_cmp_gt_u32 vcc, 2, v{V_TID}')
        e('s_and_saveexec_b64 s[60:61], vcc')
        for p in range(2):
            e(f's_add_u32 s57, s46, {PART0 + p * 256 * REC + 1024}')
            e(f'buffer_store_dword v32, v34, {SRD_WS}, s57 offen sc1')
        e('s_mov_b64 exec, s[60:61]')
        e(f'v_cmp_gt_u32 vcc, 32, v{V_TID}')
        e('s_and_saveexec_b64 s[60:61], vcc')
        e(f's_mul_i32 s57, s{S_H}, 1792')
        e(f's_min_u32 s58, s{S_SI}, 13')
        e('s_lshl_b32 s58, s58, 7')
        e('s_add_u32 s58, s58, s57')
        for p in range(2):
            e(f's_add_u32 s57, s58, {Y0 + p * 16 * 1792}')
            e(f'buffer_store_dword v32, v34, {SRD_WS}, s57 offen sc1')
        e('s_mov_b64 exec, s[60:61]')
        e(f'v_cmp_gt_u32 vcc, 4, v{V_TID}')
        e('s_and_saveexec_b64 s[60:61], vcc')
        e('s_min_u32 s58, s2, 223')
        e('s_lshl_b32 s58, s58, 4')
        for p in range(2):
            e(f's_add_u32 s57, s58, {H0 + p * 3584}')
            e(f'buffer_store_dword v32, v34, {SRD_WS}, s57 offen sc1')
        e('s_mov_b64 exec, s[60:61]')
        e(f'v_cmp_gt_u32 vcc, 8, v{V_TID}')
        e('s_and_saveexec_b64 s[60:61], vcc')
        e('s_min_u32 s58, s2, 223')
        e('s_and_b32 s57, s58, 3')
        e('s_mul_i32 s57, s57, 1792')
        e('s_lshr_b32 s58, s58, 2')
        e('s_lshl_b32 s58, s58, 5')
        e('s_add_u32 s57, s57, s58')
        e(f's_add_u32 s57, s57, {X2P0}')
        e(f'buffer_store_dword v32, v34, {SRD_WS}, s57 offen sc1')
        e(f's_lshl_b32 s57, s{S_H}, 9')
        e(f's_lshl_b32 s58, s{S_SI}, 5')
        e('s_add_u32 s57, s57, s58')
        e(f's_add_u32 s57, s57, {Q20}')
        e(f'buffer_store_dword v32, v34, {SRD_WS}, s57 offen sc1')
        e('s_mov_b64 exec, s[60:61]')
        self.lab(skc)
        self.vmq += ['phantom'] * 10

        self.c('x loads')
        self.srd(20, P_X, 896)
        e(f'v_and_b32 v30, 63, v{V_TID}')
        e('v_lshlrev_b32 v36, 2, v30')
        for i in range(4):
            self.vm(f'buffer_load_dword v{40 + i}, v36, {SRD_T}, 0 offen offset:{256 * i}', 'x')
        e(f'v_lshlrev_b32 v36, 2, v{V_TID}')
        self.vm(f'buffer_load_dword v{V_XR}, v36, {SRD_T}, 0 offen', 'x')
        e('v_lshrrev_b32 v36, 4, v30')
        e('v_bfe_u32 v37, v30, 2, 2')
        e('v_lshl_add_u32 v36, v37, 2, v36')
        e(f's_mul_i32 s57, s{S_W}, 112')
        e('v_add_u32 v36, s57, v36')
        e('v_lshlrev_b32 v36, 1, v36')
        for i in range(7):
            self.vm(f'buffer_load_ushort v{48 + i}, v36, {SRD_T}, 0 offen offset:{32 * i}', 'x')

        held = []
        for s in range(nreg):
            held.append(('K', s, 'reg', 4 + 2 * s))
            held.append(('V', s, 'reg', 5 + 2 * s))
        for s in range(nlds):
            held.append(('K', nreg + s, 'lds', 2 * s))
            held.append(('V', nreg + s, 'lds', 2 * s + 1))
        hq = list(held)

        def issue_held(n):
            for _ in range(n):
                if not hq:
                    return
                k, s, where, idx = hq.pop(0)
                if where == 'reg':
                    self.load_tile_reg(k, s, idx, 'nt', f'{k}{s}')
                else:
                    self.load_tile_lds(k, s, idx, 'nt', f'{k}{s}')

        issue_held(2)

        def load_wq(i, ti):
            e(f's_mul_i32 s46, s{S_W}, {7 * 16 * 8192}')
            e(f's_lshl_b32 s57, s{S_H}, 9')
            e('s_add_u32 s46, s46, s57')
            for t in range(4):
                e(f's_add_u32 s57, s46, {(16 * i + 4 * t) * 8192}')
                for half in range(2):
                    self.vm(f'buffer_load_dwordx4 {unit(ti, t, half)}, v55, {SRD_T}, s57 offen offset:{half * 256}', f'wq{i}')
        e('s_nop 0')
        self.srd(20, P_WQ, 448 * 8192)
        e('v_lshrrev_b32 v55, 4, v30')
        e('v_lshlrev_b32 v55, 13, v55')
        e('v_and_b32 v37, 15, v30')
        e('v_lshl_add_u32 v55, v37, 4, v55')
        for i in range(4):
            load_wq(i, i)

        self.wait('x')
        self.c('LN(x)')
        for i in range(4):
            e(f'v_lshlrev_b32 v{56 + 2 * i}, 16, v{40 + i}')
            e(f'v_and_b32 v{57 + 2 * i}, 0xffff0000, v{40 + i}')
        e('v_add_f32 v44, v56, v57')
        for i in range(58, 64):
            e(f'v_add_f32 v44, v44, v{i}')
        self.wave_reduce('add', 44)
        e(f'v_mul_f32 v44, {f2u(1.0 / 448):#x}, v44')
        for i in range(56, 64):
            e(f'v_sub_f32 v{i}, v{i}, v44')
        e('v_cmp_gt_u32 vcc, 32, v30')
        e('s_nop 1')
        e('v_cndmask_b32 v62, 0, v62, vcc')
        e('v_cndmask_b32 v63, 0, v63, vcc')
        e('v_mul_f32 v45, v56, v56')
        for i in range(57, 64):
            e(f'v_fmac_f32 v45, v{i}, v{i}')
        self.wave_reduce('add', 45)
        e(f'v_mul_f32 v45, {f2u(1.0 / 448):#x}, v45')
        e(f'v_add_f32 v45, {f2u(1e-5):#x}, v45')
        e('v_rsq_f32 v45, v45')
        e('s_nop 0')
        for i in range(7):
            e(f'v_lshlrev_b32 v{48 + i}, 16, v{48 + i}')
            e(f'v_sub_f32 v{48 + i}, v{48 + i}, v44')
            e(f'v_mul_f32 v{48 + i}, v{48 + i}, v45')
            e(f'v_cvt_pk_bf16_f32 v{48 + i}, v{48 + i}, v{48 + i}')
        e('s_waitcnt lgkmcnt(0)')
        e('s_barrier')
        skb = self.newlab('AT')
        e(f's_cmp_lg_u32 s{S_W}, 0')
        e(f's_cbranch_scc1 {skb}')
        e(f'v_cmp_eq_u32 vcc, 0, v{V_TID}')
        e('s_and_saveexec_b64 s[60:61], vcc')
        e('v_mov_b32 v46, 0')
        e('v_mov_b32 v47, 1')
        e(f'global_atomic_add v46, v47, s[{P_DBG}:{P_DBG + 1}] sc1')
        e('s_mov_b64 exec, s[60:61]')
        self.lab(skb)
        for i in range(8):
            e(f'v_mov_b32 v{V_O + i}, 0')
        for i in range(7):
            self.wait(f'wq{i}')
            self.pv(('reg', i % 4), ppk=48 + i)
            if i + 4 < 7:
                load_wq(i + 4, i)
            issue_held(1)
        self.c('q1 finalize')
        e('s_nop 7')
        e(f'v_and_b32 v{V_T}, 63, v{V_TID}')
        e(f'v_and_b32 v32, 15, v{V_T}')
        e(f'v_lshrrev_b32 v33, 4, v{V_T}')
        e('v_lshlrev_b32 v32, 5, v32')
        e('v_lshl_add_u32 v32, v33, 4, v32')
        e(f's_mul_i32 s57, s{S_W}, 1040')
        e(f's_add_u32 s57, s57, {COMB}')
        e('v_add_u32 v32, s57, v32')
        e(f'v_cmp_gt_u32 vcc, 32, v{V_T}')
        e('s_and_saveexec_b64 s[60:61], vcc')
        e(f'ds_write_b128 v32, v[{V_O}:{V_O + 3}]')
        e(f'ds_write_b128 v32, v[{V_O + 4}:{V_O + 7}] offset:512')
        e('s_mov_b64 exec, s[60:61]')
        e('s_waitcnt lgkmcnt(0)')
        e('s_barrier')
        e(f'v_lshlrev_b32 v32, 2, v{V_TID}')
        e(f'v_add_u32 v32, {COMB}, v32')
        for w in range(4):
            e(f'ds_read_b32 v{36 + w}, v32 offset:{1040 * w}')
        e('s_waitcnt lgkmcnt(0)')
        e('v_add_f32 v36, v36, v37')
        e('v_add_f32 v38, v38, v39')
        e('v_add_f32 v36, v36, v38')
        e('v_cvt_pk_bf16_f32 v36, v36, v36')
        e(f'v_lshlrev_b32 v32, 1, v{V_TID}')
        e(f'v_add_u32 v32, {V0L}, v32')
        e(f'ds_write_b16 v32, v36')
        e('s_waitcnt lgkmcnt(0)')
        e('s_barrier')
        self.qfrag_voff(32)
        e(f'v_add_u32 v32, {V0L}, v32')
        e(f'ds_read_b128 v[{V_QB}:{V_QB + 3}], v32')
        e(f'ds_read_b128 v[{V_QB + 4}:{V_QB + 7}], v32 offset:256')
        e('s_waitcnt lgkmcnt(0)')
        self.stamp('q1 ready')
        if o['dump']:
            self.dump_q(0)

        nh = nreg + nlds
        stream = list(range(nh, 32))
        reread = stream[:-2]

        def pol1(step):
            if step not in reread:
                return 'nt'
            i = reread.index(step)
            m = o['mall']
            if m == 'none':
                return 'nt'
            if m == 'all':
                return ''
            if m == 'ddn':
                return '' if i % 3 != 2 else 'nt'
            if m == 'dn':
                return '' if i % 2 == 0 else 'nt'
            if m == 'tail15':
                return '' if i >= len(reread) - 15 else 'nt'
            raise ValueError(m)
        self.pol1 = pol1
        self.load_tile_reg('K', stream[0], 0, pol1(stream[0]), f'K{stream[0]}')
        issue_held(1)
        self.load_tile_reg('V', stream[0], 1, pol1(stream[0]), f'V{stream[0]}')
        issue_held(1)
        self.load_tile_reg('K', stream[1], 2, pol1(stream[1]), f'K{stream[1]}')
        issue_held(1)
        self.load_tile_reg('V', stream[1], 3, pol1(stream[1]), f'V{stream[1]}')
        issue_held(100)
        self.load_w_s2(('spare', WA), 'wA')
        self.init_softmax()
        for s in range(nreg):
            self.step_job(('reg', 4 + 2 * s), ('reg', 5 + 2 * s), f'K{s}', f'V{s}')
        for s in range(nlds):
            st = nreg + s
            self.step_job(('lds', 2 * s), ('lds', 2 * s + 1), f'K{st}', f'V{st}')
        self.stamp('held done p1')
        for i, st in enumerate(stream):
            sl = i & 1
            nk = nv = None
            if i + 2 < len(stream):
                nx = stream[i + 2]
                nk = (lambda nx=nx, sl=sl: self.load_tile_reg('K', nx, 2 * sl, pol1(nx), f'K{nx}'))
                nv = (lambda nx=nx, sl=sl: self.load_tile_reg('V', nx, 2 * sl + 1, pol1(nx), f'V{nx}'))
            self.step_job(('reg', 2 * sl), ('reg', 2 * sl + 1), f'K{st}', f'V{st}', nk, nv)
        slot_of = {stream[-2]: (len(stream) - 2) & 1, stream[-1]: (len(stream) - 1) & 1}
        self.stamp('pass1 done')

        self.check_cleared()
        self.pass_end(0)
        self.load_w_s3(('spare', WB), 'wB')
        self.stage_s2(0, ('spare', WA))
        self.wait_conditional_drain()
        self.load_w_s4mid(('spare', WA), 'wA2')
        self.stage_s3(0, ('spare', WB))
        self.wait_conditional_drain()
        self.load_w_s5(('spare', WB), 'wB2')
        self.stage_s4(0, ('spare', WA), False)
        self.wait_conditional_drain()
        self.stage_s5(('spare', WB))
        self.stage_s6()
        if o['dump']:
            self.dump_q(1)

        self.init_softmax()
        order = list(reread)
        if o['p2order'] == 'rev':
            order = order[::-1]
        p2 = o['p2pol']
        tags = {}
        first = [stream[-2], stream[-1]]
        slot_seq = []
        for i, st in enumerate(first):
            sl = slot_of[st]
            nx = order[i]
            nk = (lambda nx=nx, sl=sl: self.load_tile_reg('K', nx, 2 * sl, p2, f'K{nx}'))
            nv = (lambda nx=nx, sl=sl: self.load_tile_reg('V', nx, 2 * sl + 1, p2, f'V{nx}'))
            self.step_job(('reg', 2 * sl), ('reg', 2 * sl + 1), None, None, nk, nv)
            slot_seq.append(sl)
        for s in range(nlds):
            self.step_job(('lds', 2 * s), ('lds', 2 * s + 1), None, None)
        self.load_w_s2(('own', 0), 'wA')
        self.load_w_s3(('own', 4096), 'wB')
        self.load_w_s4tail(('own', 8192), 'wC')
        for s in range(nreg):
            self.step_job(('reg', 4 + 2 * s), ('reg', 5 + 2 * s), None, None)
        self.stamp('held done p2')
        for i, st in enumerate(order):
            sl = slot_seq[i & 1]
            nk = nv = None
            if i + 2 < len(order):
                nx = order[i + 2]
                nk = (lambda nx=nx, sl=sl: self.load_tile_reg('K', nx, 2 * sl, p2, f'K{nx}'))
                nv = (lambda nx=nx, sl=sl: self.load_tile_reg('V', nx, 2 * sl + 1, p2, f'V{nx}'))
            self.step_job(('reg', 2 * sl), ('reg', 2 * sl + 1), f'K{st}', f'V{st}', nk, nv)
        self.stamp('pass2 done')

        self.pass_end(1)
        self.stage_s2(1, ('own', 0))
        self.wait_conditional_drain()
        e('s_cmp_ge_u32 s2, 224')
        e('s_cbranch_scc1 FIN')
        self.stage_s3(1, ('own', 4096))
        self.stage_s4(1, ('own', 8192), True)
        self.lab('FIN')
        self.stamp('end')
        if o['stamps']:
            self.write_stamps()
        self.lab('END')
        e('s_endpgm')
        self.slow_routine()

    def wait_conditional_drain(self):
        pass

    def check_cleared(self):
        self.c('all workgroups have cleared their slots')
        lp = self.newlab('CC')
        dn = self.newlab('CD')
        e = self.e
        e(f's_mov_b32 s{S_SPIN}, 0')
        e('v_mov_b32 v32, 0')
        self.lab(lp)
        e(f'global_load_dword v33, v32, s[{P_DBG}:{P_DBG + 1}] sc1')
        e('s_waitcnt vmcnt(0)')
        e('v_cmp_gt_u32 vcc, 0x100, v33')
        e(f's_cbranch_vccz {dn}')
        e(f's_add_u32 s{S_SPIN}, s{S_SPIN}, 1')
        e(f's_cmp_lt_u32 s{S_SPIN}, {self.o["spin"]}')
        e('s_sleep 2')
        e(f's_cbranch_scc1 {lp}')
        self.lab(dn)
        self.vmq = []

    def dump_q(self, k):
        e = self.e
        sk = self.newlab('DQ')
        e(f's_or_b32 s57, s{S_SI}, s{S_W}')
        e('s_cmp_lg_u32 s57, 0')
        e(f's_cbranch_scc1 {sk}')
        e(f's_lshl_b32 s57, s{S_H}, 11')
        e(f's_add_u32 s57, s57, {DUMP0 + k * 32768}')
        e(f'v_lshlrev_b32 v32, 5, v{V_TID}')
        e(f'buffer_store_dwordx4 v[{V_QB}:{V_QB + 3}], v32, {SRD_WS}, s57 offen')
        e(f'buffer_store_dwordx4 v[{V_QB + 4}:{V_QB + 7}], v32, {SRD_WS}, s57 offen offset:16')
        e('s_waitcnt vmcnt(0)')
        self.lab(sk)
        self.vmq = []

    def write_stamps(self):
        e = self.e
        sk = self.newlab('WS')
        e(f's_cmp_lg_u32 s{S_W}, 0')
        e(f's_cbranch_scc1 {sk}')
        e(f'v_cmp_eq_u32 vcc, 0, v{V_TID}')
        e('s_and_saveexec_b64 s[60:61], vcc')
        e('s_lshl_b32 s57, s2, 7')
        e(f's_add_u32 s57, s57, {STAMP0}')
        e('v_mov_b32 v34, 0')
        for k in range(self.nstamp):
            e(f'v_mov_b32 v32, s{80 + k}')
            e(f'buffer_store_dword v32, v34, {SRD_WS}, s57 offen offset:{4 * k}')
            e('s_nop 1')
        e('s_waitcnt vmcnt(0)')
        e('s_mov_b64 exec, s[60:61]')
        self.lab(sk)

    def text(self):
        hdr = open('cdna_kernels/' + NAME + '.s.ref').read().split('; Override launch')[0]
        out = [hdr.rstrip('\n')]
        out.append(f'; @launch grid=(256,1,1) block=(256,1,1) lds={LDS_BYTES}')
        out.append('.amdgcn_target "amdgcn-amd-amdhsa--gfx950"')
        out.append('.text')
        out.append(f'.globl {NAME}_kernel')
        out.append('.p2align 8')
        out.append(f'.type {NAME}_kernel,@function')
        out += self.lines
        out.append('.section .rodata,"a"')
        out.append('.p2align 6')
        out.append(f'.amdhsa_kernel {NAME}_kernel')
        out.append('  .amdhsa_next_free_vgpr 512')
        out.append('  .amdhsa_next_free_sgpr 102')
        out.append('  .amdhsa_accum_offset 256')
        out.append('  .amdhsa_group_segment_fixed_size 0')
        out.append('  .amdhsa_kernarg_size 96')
        out.append('  .amdhsa_user_sgpr_count 2')
        out.append('  .amdhsa_user_sgpr_kernarg_segment_ptr 1')
        out.append('  .amdhsa_system_sgpr_workgroup_id_x 1')
        out.append('  .amdhsa_float_denorm_mode_32 3')
        out.append('.end_amdhsa_kernel')
        return '\n'.join(out) + '\n'


def generate(path, **kw):
    opt = dict(OPT)
    opt.update(kw)
    g = Gen(opt)
    g.build()
    open(path, 'w').write(g.text())
    return g


if __name__ == '__main__':
    path = sys.argv[1]
    kw = json.loads(sys.argv[2]) if len(sys.argv) > 2 else {}
    g = generate(path, **kw)
    print('lines', len(g.lines), 'stamps', g.nstamp, g.stamp_names)
    json.dump(dict(stamps=g.stamp_names), open(path + '.json', 'w'))
```

```python
import sys, json

NAME = 'interleave_layers__mha_block_cached__glu_gated_swiglu__decode'

OPT = dict(
    stamps=False,
    nreg=5,
    nlds=2,
    mall='none',
    p2pol='nt',
    p2order='fwd',
    delays=(0, 14, 10, 10, 8),
    spin=1 << 15,
    dump=False,
    codewarm=True,
    blind='wave',
    p2local=None,
    hmap=4,
    fine=None,
    prepoll=True,
)

REC = 1152
PART0 = 0
Y0 = PART0 + 2 * 256 * REC
H0 = Y0 + 2 * 16 * 1792
X2P0 = H0 + 2 * 3584
Q20 = X2P0 + 4 * 1792
STAMP0 = Q20 + 16 * 512
DUMP0 = STAMP0 + 256 * 128
WS_BYTES = DUMP0 + (1 << 20)

LDS_BYTES = 163840
SPARE = 131072
WA = SPARE
WB = SPARE + 16384
SCR = SPARE + 30720
V0L = SCR
REDL = SCR + 1024
STATL = SCR + 1536
COMB = WB

V_TID, V_OK, V_OV, V_LRD = 0, 1, 2, 3
V_MASK = 4
V_QB = 8
V_O = 16
V_M, V_MC, V_L, V_S, V_P, V_PPK, V_T, V_XR = 24, 25, 26, 27, 28, 29, 30, 31
V_D = 32
V_X = 48
S_W, S_H, S_SI, S_CLS, S_VV = 3, 4, 5, 6, 7
SRD_K, SRD_V, SRD_WS, SRD_T = 's[8:11]', 's[12:15]', 's[16:19]', 's[20:23]'
P_X, P_WQ, P_WO, P_W1, P_W3, P_W2, P_OUT, P_DBG = 24, 26, 28, 30, 32, 34, 36, 38
S_PB0, S_CS, S_PB1, S_LB, S_SPIN = 52, 53, 54, 55, 56
S_NX, S_END, S_MK, S_MV, S_CNT, S_P = 64, 65, 66, 67, 68, 69
S_RET, S_A0, S_A1, S_AH, S_AM = 70, 72, 74, 76, 78
LOG2E = 1.4426950408889634


def f2u(x):
    import struct
    return struct.unpack('<I', struct.pack('<f', x))[0]


def tile_reg(i):
    return ('v', 64 + 32 * i) if i < 6 else ('a', 32 * (i - 6))


def unit(ti, t, half):
    f, b = tile_reg(ti)
    r = b + (2 * t + half) * 4
    return f'{f}[{r}:{r + 3}]'


class Gen:
    def __init__(self, opt):
        self.o = opt
        self.lines = []
        self.vmq = []
        self.nlab = 0
        self.nstamp = 0
        self.stamp_names = []
        self.THR = 54

    def e(self, s):
        self.lines.append('    ' + s)

    def lab(self, s):
        self.lines.append(s + ':')

    def c(self, s):
        self.lines.append('    ; ' + s)

    def newlab(self, p='L'):
        self.nlab += 1
        return f'{p}_{self.nlab}'

    def vm(self, instr, tag):
        if len(self.vmq) >= self.THR:
            n = self.THR - 4
            self.e(f's_waitcnt vmcnt({n})')
            self.vmq = self.vmq[len(self.vmq) - n:]
        self.e(instr)
        self.vmq.append(tag)

    def wait(self, tag):
        idx = [i for i, t in enumerate(self.vmq) if t == tag]
        if not idx:
            return
        n = len(self.vmq) - 1 - idx[-1]
        self.e(f's_waitcnt vmcnt({n})')
        self.vmq = self.vmq[idx[-1] + 1:]

    def wait_all(self):
        self.e('s_waitcnt vmcnt(0)')
        self.vmq = []

    def stamp(self, name='', both=False):
        if not self.o['stamps']:
            return
        if self.o['fine'] == 'start' and name.startswith('hop'):
            return
        k = self.nstamp
        n = 2 if both else 1
        assert k + n <= 22, 'too many stamps'
        self.nstamp += n
        self.c(f'stamp {k} {name}')
        self.e('s_memrealtime s[58:59]')
        self.e('s_waitcnt lgkmcnt(0)')
        if both:
            self.stamp_names += [name + ' p0', name + ' p1']
            self.e(f's_cmp_eq_u32 s{S_P}, 0')
            self.e(f's_cselect_b32 s{80 + k}, s58, s{80 + k}')
            self.e(f's_cselect_b32 s{81 + k}, s{81 + k}, s58')
        else:
            self.stamp_names.append(name)
            self.e(f's_mov_b32 s{80 + k}, s58')

    def poff(self, dst, base, stride):
        self.e(f's_mul_i32 s{dst}, s{S_P}, {stride}')
        self.e(f's_add_u32 s{dst}, s{dst}, {base}')

    def srd(self, dst, ptr, nbytes, add=None):
        if add is None:
            self.e(f's_mov_b32 s{dst}, s{ptr}')
            self.e(f's_and_b32 s{dst + 1}, s{ptr + 1}, 0xffff')
        else:
            self.e(f's_add_u32 s{dst}, s{ptr}, s{add}')
            self.e(f's_addc_u32 s{dst + 1}, s{ptr + 1}, 0')
            self.e(f's_and_b32 s{dst + 1}, s{dst + 1}, 0xffff')
        self.e(f's_mov_b32 s{dst + 2}, {nbytes}')
        self.e(f's_mov_b32 s{dst + 3}, 0x20000')

    def rbf(self, dst, src, tmp=None):
        self.e(f'v_cvt_pk_bf16_f32 v{dst}, v{src}, v{src}')
        self.e(f'v_and_b32 v{dst}, 0xffff0000, v{dst}')

    def row_reduce(self, op, v, nops=True):
        ins = {'add': 'v_add_f32_dpp', 'max': 'v_max_f32_dpp'}[op]
        for ctl in ('quad_perm:[1,0,3,2]', 'quad_perm:[2,3,0,1]', 'row_half_mirror', 'row_mirror'):
            self.e('s_nop 1')
            self.e(f'{ins} v{v}, v{v}, v{v} {ctl} row_mask:0xf bank_mask:0xf')

    def cross_row(self, op, v):
        ins = {'add': 'v_add_f32', 'max': 'v_max_f32'}[op]
        self.e('s_nop 1')
        for i in range(4):
            self.e(f'v_readlane_b32 s{40 + i}, v{v}, {16 * i}')
        self.e('s_nop 1')
        self.e(f'v_mov_b32 v{v}, s40')
        for i in range(1, 4):
            self.e(f'{ins} v{v}, s{40 + i}, v{v}')

    def wave_reduce(self, op, v):
        self.row_reduce(op, v)
        self.cross_row(op, v)

    def soff_step(self, step):
        b = self.o['blind']
        par = 0 if b == 'wave' else (((step >> 2) ^ step) & 1 if b else (step >> 2) & 1)
        pb = S_PB1 if par else S_PB0
        self.e(f's_add_u32 s44, s{pb}, {step * 524288}')
        self.e('s_add_u32 s45, s44, 4096')

    def load_tile_reg(self, kind, step, ti, pol, tag):
        srd = SRD_K if kind == 'K' else SRD_V
        vo = V_OK if kind == 'K' else V_OV
        self.soff_step(step)
        for t in range(4):
            for half in range(2):
                so = 's44' if t < 2 else 's45'
                imm = (t & 1) * 2048 + half * 256
                self.vm(f'buffer_load_dwordx4 {unit(ti, t, half)}, v{vo}, {srd}, {so} offen offset:{imm} {pol}'.rstrip(), tag)

    def load_tile_lds(self, kind, step, slot, pol, tag):
        srd = SRD_K if kind == 'K' else SRD_V
        vo = V_OK if kind == 'K' else V_OV
        self.soff_step(step)
        for t in range(4):
            for half in range(2):
                u = 2 * t + half
                self.e(f's_add_u32 m0, s{S_LB}, {slot * 8192 + u * 1024}')
                self.e(f's_add_u32 s45, s44, {t * 2048 + half * 256}')
                self.vm(f'buffer_load_dwordx4 v{vo}, {srd}, s45 offen {pol} lds', tag)

    def dyn_soff(self):
        e = self.e
        if self.o['blind'] == 'wave':
            if self.o['p2local'] is not None:
                e(f's_bitcmp1_b32 s{S_NX}, 2')
                e('s_cselect_b32 s57, s101, s100')
                e(f's_cmp_eq_u32 s{S_P}, 0')
                e(f's_cselect_b32 s57, s{S_PB0}, s57')
                e(f's_lshl_b32 s44, s{S_NX}, 19')
                e('s_add_u32 s44, s44, s57')
                e('s_add_u32 s45, s44, 4096')
                return
            e(f's_lshl_b32 s44, s{S_NX}, 19')
            e(f's_add_u32 s44, s44, s{S_PB0}')
            e('s_add_u32 s45, s44, 4096')
            return
        e(f's_lshr_b32 s57, s{S_NX}, 2')
        if self.o['blind']:
            e(f's_xor_b32 s57, s57, s{S_NX}')
        e('s_bitcmp1_b32 s57, 0')
        e(f's_cselect_b32 s57, s{S_PB1}, s{S_PB0}')
        e(f's_lshl_b32 s44, s{S_NX}, 19')
        e('s_add_u32 s44, s44, s57')
        e('s_add_u32 s45, s44, 4096')

    def dyn_load(self, kind, ti):
        e = self.e
        srd = SRD_K if kind == 'K' else SRD_V
        vo = V_OK if kind == 'K' else V_OV
        msk = S_MK if kind == 'K' else S_MV
        lnt, ldn = self.newlab('LN'), self.newlab('LD')
        e(f's_cmp_ge_u32 s{S_NX}, s{S_END}')
        e(f's_cbranch_scc1 {ldn}')
        e(f's_bitcmp1_b32 s{msk}, s{S_NX}')
        e(f's_cbranch_scc0 {lnt}')
        for pol in ('', 'nt'):
            if pol == 'nt':
                self.lab(lnt)
            for t in range(4):
                for half in range(2):
                    so = 's44' if t < 2 else 's45'
                    imm = (t & 1) * 2048 + half * 256
                    e(f'buffer_load_dwordx4 {unit(ti, t, half)}, v{vo}, {srd}, {so} offen offset:{imm} {pol}'.rstrip())
            if pol == '':
                e(f's_branch {ldn}')
        self.lab(ldn)

    def step_routine(self, sl):
        e = self.e
        self.lab(f'STEP{sl}')
        self.dyn_soff()
        lst = self.newlab('LS')
        e(f's_cmp_lt_u32 s{S_NX}, s{S_END}')
        e(f's_cbranch_scc1 {lst}')
        e('s_waitcnt vmcnt(0)')
        self.lab(lst)
        e('s_waitcnt vmcnt(24)')
        self.qk_mfma(('reg', 2 * sl))
        self.dyn_load('K', 2 * sl)
        self.reduce_softmax(8)
        e('s_waitcnt vmcnt(24)')
        self.pv(('reg', 2 * sl + 1))
        self.dyn_load('V', 2 * sl + 1)
        e(f's_add_u32 s{S_NX}, s{S_NX}, 1')
        e(f's_setpc_b64 s[{S_RET}:{S_RET + 1}]')

    def held_routine(self):
        e = self.e
        self.lab('HELD')
        for s in range(self.o['nlds']):
            self.step_job(('lds', 2 * s), ('lds', 2 * s + 1), None, None)
        for s in range(self.o['nreg']):
            self.step_job(('reg', 4 + 2 * s), ('reg', 5 + 2 * s), None, None)
        e(f's_setpc_b64 s[{S_RET}:{S_RET + 1}]')

    def call(self, name):
        off = {'STEP0': S_A0, 'STEP1': S_A1, 'HELD': S_AH, 'MID': S_AM}[name]
        self.e(f's_swappc_b64 s[{S_RET}:{S_RET + 1}], s[{off}:{off + 1}]')

    def ring_run(self, nsteps, first_slot):
        e = self.e
        sl = first_slot
        if nsteps & 1:
            self.call(f'STEP{sl}')
            sl ^= 1
            nsteps -= 1
        if nsteps:
            lp = self.newlab('RL')
            e(f's_mov_b32 s{S_CNT}, {nsteps // 2}')
            self.lab(lp)
            self.call(f'STEP{sl}')
            self.call(f'STEP{sl ^ 1}')
            e(f's_sub_u32 s{S_CNT}, s{S_CNT}, 1')
            e(f's_cmp_lg_u32 s{S_CNT}, 0')
            e(f's_cbranch_scc1 {lp}')

    def qk_mfma(self, src):
        if src[0] == 'reg':
            ti = src[1]
            for half in range(2):
                for t in range(4):
                    d = V_D + 4 * t
                    cc = '0' if half == 0 else f'v[{d}:{d + 3}]'
                    q = V_QB + 4 * half
                    self.e(f'v_mfma_f32_16x16x32_bf16 v[{d}:{d + 3}], {unit(ti, t, half)}, v[{q}:{q + 3}], {cc}')
        else:
            slot = src[1]
            for tp in range(2):
                for k in range(4):
                    u = tp * 4 + k
                    self.e(f'ds_read_b128 v[{V_X + 4 * k}:{V_X + 4 * k + 3}], v{V_LRD} offset:{slot * 8192 + u * 1024}')
                for k in range(4):
                    t = tp * 2 + k // 2
                    half = k & 1
                    self.e(f's_waitcnt lgkmcnt({3 - k})')
                    d = V_D + 4 * t
                    cc = '0' if half == 0 else f'v[{d}:{d + 3}]'
                    q = V_QB + 4 * half
                    self.e(f'v_mfma_f32_16x16x32_bf16 v[{d}:{d + 3}], v[{V_X + 4 * k}:{V_X + 4 * k + 3}], v[{q}:{q + 3}], {cc}')

    def reduce_softmax(self, pad):
        if pad > 0:
            self.e(f's_nop {pad - 1}')
        qp = ['[0,0,0,0]', '[1,1,1,1]', '[2,2,2,2]', '[3,3,3,3]']
        for t in range(4):
            d = V_D + 4 * t
            self.e(f'v_mov_b32_dpp v{d}, v{d} quad_perm:{qp[0]} row_mask:0xf bank_mask:0xf')
        for r in (1, 2):
            for t in range(4):
                d = V_D + 4 * t
                self.e(f'v_add_f32_dpp v{d}, v{d + r}, v{d} quad_perm:{qp[r]} row_mask:0xf bank_mask:0xf')
        for t in range(4):
            d = V_D + 4 * t
            self.e(f'v_add_f32_dpp v{V_S}, v{d + 3}, v{d} quad_perm:{qp[3]} row_mask:0xf bank_mask:{1 << t:#x}')
        self.e(f'v_cvt_pk_bf16_f32 v{V_S}, v{V_S}, v{V_S}')
        self.e(f'v_and_b32 v{V_S}, 0xffff0000, v{V_S}')
        self.e(f'v_cmp_gt_f32 vcc, v{V_S}, v{V_M}')
        sk = self.newlab('SK')
        self.e(f's_cbranch_vccz {sk}')
        self.e('s_swappc_b64 s[50:51], s[48:49]')
        self.lab(sk)
        self.e(f'v_fma_f32 v{V_P}, v{V_S}, s{S_CS}, -v{V_MC}')
        self.e(f'v_exp_f32 v{V_P}, v{V_P}')
        self.e('s_nop 0')
        self.e(f'v_add_f32 v{V_L}, v{V_L}, v{V_P}')
        self.e(f'v_cvt_pk_bf16_f32 v{V_PPK}, v{V_P}, v{V_P}')
        self.e('s_nop 1')

    def pv(self, src, ppk=V_PPK):
        def build(t):
            a = V_D + 4 * (t & 1)
            for k in range(4):
                self.e(f'v_and_b32_dpp v{a + k}, v{ppk}, v{V_MASK + k} row_newbcast:{4 * t} row_mask:0xf bank_mask:0xf')

        def mf(t, b0, b1):
            a = V_D + 4 * (t & 1)
            self.e(f'v_mfma_f32_16x16x32_bf16 v[{V_O}:{V_O + 3}], v[{a}:{a + 3}], {b0}, v[{V_O}:{V_O + 3}]')
            self.e(f'v_mfma_f32_16x16x32_bf16 v[{V_O + 4}:{V_O + 7}], v[{a}:{a + 3}], {b1}, v[{V_O + 4}:{V_O + 7}]')
        if src[0] == 'reg':
            ti = src[1]
            build(0)
            build(1)
            for t in range(4):
                mf(t, unit(ti, t, 0), unit(ti, t, 1))
                if t + 2 < 4:
                    build(t + 2)
                    if t + 2 == 3:
                        pass
        else:
            slot = src[1]
            for tp in range(2):
                for k in range(4):
                    u = tp * 4 + k
                    self.e(f'ds_read_b128 v[{V_X + 4 * k}:{V_X + 4 * k + 3}], v{V_LRD} offset:{slot * 8192 + u * 1024}')
                build(2 * tp)
                build(2 * tp + 1)
                self.e('s_waitcnt lgkmcnt(2)')
                mf(2 * tp, f'v[{V_X}:{V_X + 3}]', f'v[{V_X + 4}:{V_X + 7}]')
                self.e('s_waitcnt lgkmcnt(0)')
                mf(2 * tp + 1, f'v[{V_X + 8}:{V_X + 11}]', f'v[{V_X + 12}:{V_X + 15}]')

    def slow_routine(self):
        self.lab('SLOW')
        self.e(f'v_mov_b32 v{V_T}, v{V_S}')
        self.e('s_nop 1')
        self.e(f'v_max_f32_dpp v{V_T}, v{V_T}, v{V_T} row_ror:4 row_mask:0xf bank_mask:0xf')
        self.e('s_nop 1')
        self.e(f'v_max_f32_dpp v{V_T}, v{V_T}, v{V_T} row_ror:8 row_mask:0xf bank_mask:0xf')
        self.cross_row('max', V_T)
        self.e(f'v_max_f32 v{V_M}, v{V_M}, v{V_T}')
        self.e(f'v_mul_f32 v{V_T}, s{S_CS}, v{V_M}')
        self.e(f'v_sub_f32 v{V_P}, v{V_MC}, v{V_T}')
        self.e(f'v_exp_f32 v{V_P}, v{V_P}')
        self.e(f'v_mov_b32 v{V_MC}, v{V_T}')
        self.e('s_nop 7')
        for i in range(8):
            self.e(f'v_mul_f32 v{V_O + i}, v{V_O + i}, v{V_P}')
        self.e(f'v_mul_f32 v{V_L}, v{V_L}, v{V_P}')
        self.e('s_setpc_b64 s[50:51]')

    def init_softmax(self):
        self.e(f'v_mov_b32 v{V_M}, 0xff7fffff')
        self.e(f'v_mul_f32 v{V_MC}, s{S_CS}, v{V_M}')
        self.e(f'v_mov_b32 v{V_L}, 0')
        for i in range(8):
            self.e(f'v_mov_b32 v{V_O + i}, 0')

    def poll(self, issue, regs, delay, name, backoff=2):
        if delay:
            self.e(f's_sleep {delay}')
        lp = self.newlab('PL')
        dn = self.newlab('PD')
        self.e(f's_mov_b32 s{S_SPIN}, 0')
        self.lab(lp)
        issue()
        self.e('s_waitcnt vmcnt(0)')
        t = V_T
        rs = list(regs)
        self.e(f'v_max_u32 v{t}, v{rs[0]}, v{rs[1]}' if len(rs) > 1 else f'v_mov_b32 v{t}, v{rs[0]}')
        rs = rs[2:]
        while len(rs) >= 2:
            self.e(f'v_max3_u32 v{t}, v{rs[0]}, v{rs[1]}, v{t}')
            rs = rs[2:]
        if rs:
            self.e(f'v_max_u32 v{t}, v{rs[0]}, v{t}')
        self.e(f'v_cmp_eq_u32 vcc, -1, v{t}')
        self.e(f's_cbranch_vccz {dn}')
        self.e(f's_add_u32 s{S_SPIN}, s{S_SPIN}, 1')
        self.e(f's_cmp_lt_u32 s{S_SPIN}, {self.o["spin"]}')
        self.e(f's_sleep {backoff}')
        self.e(f's_cbranch_scc1 {lp}')
        self.lab(dn)
        self.vmq = []

    def dma_rows(self, ptr, nbytes_total, row_stride, row0_sgpr_expr, rows_per_unit, bytes_per_row, col_off_s, lds_s, nunits, tag, skip_tail=None):
        lpr = bytes_per_row // 16
        self.srd(20, ptr, nbytes_total)
        v = V_T
        self.e(f'v_and_b32 v{v}, 63, v{V_TID}')
        if lpr == 1:
            self.e(f's_mov_b32 s57, {row_stride}')
            self.e(f'v_mul_lo_u32 v{v}, v{v}, s57')
        else:
            sh = lpr.bit_length() - 1
            self.e(f'v_lshrrev_b32 v{V_P}, {sh}, v{v}')
            self.e(f'v_and_b32 v{v}, {lpr - 1}, v{v}')
            self.e(f'v_lshlrev_b32 v{v}, 4, v{v}')
            self.e(f's_mov_b32 s57, {row_stride}')
            self.e(f'v_mul_lo_u32 v{V_P}, v{V_P}, s57')
            self.e(f'v_add_u32 v{v}, v{v}, v{V_P}')
        for u in range(nunits):
            sk = None
            if skip_tail is not None and u >= skip_tail:
                sk = True
            if sk and u == skip_tail:
                self._dma_skip = self.newlab('DS')
                self.e(f's_cmp_eq_u32 s{S_W}, 3')
                self.e(f's_cbranch_scc1 {self._dma_skip}')
            self.e(f's_add_u32 m0, s47, {u * 1024}')
            self.e(f's_add_u32 s57, s46, {u * rows_per_unit * row_stride}')
            instr = f'buffer_load_dwordx4 v{v}, {SRD_T}, s57 offen lds'
            if sk:
                self.e(instr)
            else:
                self.vm(instr, tag)
        if skip_tail is not None and skip_tail < nunits:
            self.lab(self._dma_skip)

    def load_w_s2(self, lds_base_const, tag):
        self.c('S2 weights (wo slice)')
        self.e(f's_lshl_b32 s46, s{S_H}, 8')
        self.e(f's_lshl_b32 s57, s{S_W}, 6')
        self.e('s_add_u32 s46, s46, s57')
        self.e('s_mul_i32 s46, s46, 896')
        self.e(f's_min_u32 s57, s{S_SI}, 13')
        self.e('s_lshl_b32 s57, s57, 6')
        self.e('s_add_u32 s46, s46, s57')
        self.lds_dest(lds_base_const)
        self.dma_rows(P_WO, 4096 * 896, 896, None, 16, 64, None, None, 4, tag)

    def lds_dest(self, base):
        kind, cst = base
        if kind == 'spare':
            self.e(f's_lshl_b32 s47, s{S_W}, 12')
            self.e(f's_add_u32 s47, s47, {cst}')
        elif kind == 'own':
            self.e(f's_add_u32 s47, s{S_LB}, {cst}')
        else:
            sp, ow = cst
            self.e(f's_lshl_b32 s47, s{S_W}, 12')
            self.e(f's_add_u32 s47, s47, {sp}')
            self.e(f's_add_u32 s63, s{S_LB}, {ow}')
            self.e(f's_cmp_eq_u32 s{S_P}, 0')
            self.e('s_cselect_b32 s47, s47, s63')

    def load_w_s3(self, base, tag):
        self.c('S3 weights (w1/w3 slices)')
        for mi, ptr in enumerate((P_W1, P_W3)):
            self.e(f's_lshl_b32 s46, s{S_W}, 7')
            self.e('s_mul_i32 s46, s46, 3584')
            self.e('s_min_u32 s57, s2, 223')
            self.e('s_lshl_b32 s57, s57, 4')
            self.e('s_add_u32 s46, s46, s57')
            self.lds_dest(base)
            if mi == 1:
                self.e(f's_cmp_eq_u32 s{S_W}, 3')
                self.e('s_cselect_b32 s57, 1, 2')
                self.e('s_lshl_b32 s57, s57, 10')
                self.e('s_add_u32 s47, s47, s57')
            self.dma_rows(ptr, 448 * 3584, 3584, None, 64, 16, None, None, 2, tag, skip_tail=1)

    def load_w_s4mid(self, base, tag):
        self.c('S4 (mid) weights (w2 slice)')
        self.e('s_min_u32 s58, s2, 223')
        self.e('s_and_b32 s46, s58, 3')
        self.e('s_mul_i32 s46, s46, 448')
        self.e(f's_lshl_b32 s57, s{S_W}, 7')
        self.e('s_add_u32 s46, s46, s57')
        self.e('s_mul_i32 s46, s46, 896')
        self.e('s_lshr_b32 s57, s58, 2')
        self.e('s_lshl_b32 s57, s57, 4')
        self.e('s_add_u32 s46, s46, s57')
        self.lds_dest(base)
        self.dma_rows(P_W2, 1792 * 896, 896, None, 64, 16, None, None, 2, tag, skip_tail=1)

    def load_w_s4tail(self, base, tag):
        self.c('S4 (tail) weights (w2 slice)')
        self.e(f's_mul_i32 s46, s{S_W}, {448 * 896}')
        self.e('s_min_u32 s57, s2, 55')
        self.e('s_lshl_b32 s57, s57, 4')
        self.e('s_add_u32 s46, s46, s57')
        self.lds_dest(base)
        self.dma_rows(P_W2, 1792 * 896, 896, None, 64, 16, None, None, 7, tag)

    def load_w_s5(self, base, tag):
        self.c('S5 weights (wq slice)')
        self.e(f's_lshl_b32 s46, s{S_W}, 7')
        self.e('s_mul_i32 s46, s46, 8192')
        self.e(f's_lshl_b32 s57, s{S_H}, 9')
        self.e('s_add_u32 s46, s46, s57')
        self.e(f's_lshl_b32 s57, s{S_SI}, 5')
        self.e('s_add_u32 s46, s46, s57')
        self.lds_dest(base)
        self.dma_rows(P_WQ, 448 * 8192, 8192, None, 32, 32, None, None, 4, tag, skip_tail=2)

    def lds_wave_addr(self, v, base):
        self.lds_dest(base)
        self.e(f'v_mov_b32 v{v}, s47')

    def tr_addr(self, v, base, pitch, mode):
        t1, t2 = V_T, V_P
        self.lds_dest(base)
        self.e(f'v_and_b32 v{t1}, 63, v{V_TID}')
        self.e(f'v_lshrrev_b32 v{t2}, 4, v{t1}')
        self.e(f'v_bfe_u32 v{v}, v{t1}, 2, 2')
        self.e(f'v_lshl_add_u32 v{v}, v{t2}, 3, v{v}')
        self.e(f'v_mul_u32_u24 v{v}, {pitch}, v{v}')
        if mode == 'full':
            self.e(f'v_and_b32 v{t2}, 3, v{t1}')
            self.e(f'v_lshl_add_u32 v{v}, v{t2}, 3, v{v}')
        elif mode == 'dup8':
            self.e(f'v_and_b32 v{t2}, 1, v{t1}')
            self.e(f'v_lshl_add_u32 v{v}, v{t2}, 3, v{v}')
        elif mode == 'two8':
            self.e(f'v_and_b32 v{t2}, 1, v{t1}')
            self.e(f'v_lshl_add_u32 v{v}, v{t2}, 3, v{v}')
            self.e(f's_cmp_eq_u32 s{S_W}, 3')
            self.e('s_cselect_b32 s57, 1, 2')
            self.e('s_lshl_b32 s57, s57, 10')
            self.e(f'v_bfe_u32 v{t2}, v{t1}, 1, 1')
            self.e(f'v_mul_lo_u32 v{t2}, v{t2}, s57')
            self.e(f'v_add_u32 v{v}, v{v}, v{t2}')
        self.e(f'v_add_u32 v{v}, s47, v{v}')

    def gemv_x_stage(self, wbase, pitch, mode, ones):
        va, vb = 36, 37
        self.tr_addr(vb, wbase, pitch, mode)
        self.e(f'v_and_b32 v{va}, 63, v{V_TID}')
        self.e(f'v_lshrrev_b32 v{va}, 4, v{va}')
        self.e(f'v_lshlrev_b32 v{va}, 4, v{va}')
        self.e(f's_lshl_b32 s57, s{S_W}, 8')
        self.e(f's_add_u32 s57, s57, {V0L}')
        self.e(f'v_add_u32 v{va}, s57, v{va}')
        if ones:
            self.e(f'v_and_b32 v{V_T}, 15, v{V_TID}')
            self.e(f'v_cmp_eq_u32 s[62:63], 1, v{V_T}')
            self.e('v_mov_b32 v38, 0x3f803f80')
        for i in range(4):
            self.e(f'v_mov_b32 v{32 + i}, 0')
        sk = self.newlab('GK')
        for kb in range(4):
            if kb == 2:
                self.e(f's_cmp_eq_u32 s{S_W}, 3')
                self.e(f's_cbranch_scc1 {sk}')
            a = 40 + 4 * (kb & 1) * 0
            self.e(f'ds_read_b128 v[40:43], v{va} offset:{kb * 64}')
            self.e(f'ds_read_b64_tr_b16 v[44:45], v{vb} offset:{kb * 32 * pitch}')
            self.e(f'ds_read_b64_tr_b16 v[46:47], v{vb} offset:{kb * 32 * pitch + 4 * pitch}')
            self.e('s_waitcnt lgkmcnt(0)')
            if ones:
                for i in range(4):
                    self.e(f'v_cndmask_b32 v{40 + i}, v{40 + i}, v38, s[62:63]')
                self.e('s_nop 1')
            self.e('v_mfma_f32_16x16x32_bf16 v[32:35], v[40:43], v[44:47], v[32:35]')
        self.lab(sk)
        self.e('s_nop 7')
        self.red_write()

    def red_write(self):
        self.e(f'v_and_b32 v{V_T}, 63, v{V_TID}')
        self.e(f'v_cmp_gt_u32 vcc, 16, v{V_T}')
        self.e(f's_lshl_b32 s57, s{S_W}, 7')
        self.e(f's_add_u32 s57, s57, {REDL}')
        self.e(f'v_lshlrev_b32 v{V_T}, 3, v{V_T}')
        self.e(f'v_add_u32 v{V_T}, s57, v{V_T}')
        self.e('s_and_saveexec_b64 s[60:61], vcc')
        self.e(f'ds_write_b64 v{V_T}, v[32:33]')
        self.e('s_mov_b64 exec, s[60:61]')

    def red_read(self):
        self.e(f'v_and_b32 v{V_T}, 15, v{V_TID}')
        self.e(f'v_lshlrev_b32 v{V_T}, 3, v{V_T}')
        self.e(f'v_add_u32 v{V_T}, {REDL}, v{V_T}')
        for w in range(4):
            self.e(f'ds_read_b64 v[{32 + 2 * w}:{33 + 2 * w}], v{V_T} offset:{128 * w}')
        self.e('s_waitcnt lgkmcnt(0)')
        self.e('v_add_f32 v32, v32, v34')
        self.e('v_add_f32 v36, v36, v38')
        self.e('v_add_f32 v33, v33, v35')
        self.e('v_add_f32 v37, v37, v39')
        self.e('v_add_f32 v32, v32, v36')
        self.e('v_add_f32 v33, v33, v37')

    def x_update_and_stats(self, acc_lo, acc_hi):
        a, b = acc_lo, acc_hi
        self.rbf(a, a)
        self.rbf(b, b)
        self.e(f'v_lshlrev_b32 v40, 16, v{V_XR}')
        self.e(f'v_and_b32 v41, 0xffff0000, v{V_XR}')
        self.e(f'v_add_f32 v40, v40, v{a}')
        self.e(f'v_add_f32 v41, v41, v{b}')
        self.e(f'v_cvt_pk_bf16_f32 v{V_XR}, v40, v41')
        self.e(f'v_cmp_gt_u32 vcc, 224, v{V_TID}')
        self.e('s_nop 1')
        self.e(f'v_cndmask_b32 v{V_XR}, 0, v{V_XR}, vcc')
        self.e(f'v_lshlrev_b32 v42, 2, v{V_TID}')
        self.e(f'v_add_u32 v42, {V0L}, v42')
        self.e(f'ds_write_b32 v42, v{V_XR}')
        self.e(f'v_lshlrev_b32 v40, 16, v{V_XR}')
        self.e(f'v_and_b32 v41, 0xffff0000, v{V_XR}')
        self.e('v_add_f32 v43, v40, v41')
        self.e('v_mul_f32 v44, v40, v40')
        self.e('v_fmac_f32 v44, v41, v41')
        self.wave_reduce('add', 43)
        self.wave_reduce('add', 44)
        self.e('v_mov_b32 v46, v43')
        self.e('v_mov_b32 v47, v44')
        self.e(f's_lshl_b32 s57, s{S_W}, 3')
        self.e(f's_add_u32 s57, s57, {STATL}')
        self.e('v_mov_b32 v45, s57')
        self.e('ds_write_b64 v45, v[46:47]')
        self.e('s_waitcnt lgkmcnt(0)')

    def stats_read(self):
        self.e(f'v_mov_b32 v45, {STATL}')
        self.e('ds_read_b128 v[40:43], v45')
        self.e('ds_read_b128 v[44:47], v45 offset:16')
        self.e('s_waitcnt lgkmcnt(0)')
        self.e('v_add_f32 v40, v40, v42')
        self.e('v_add_f32 v44, v44, v46')
        self.e('v_add_f32 v41, v41, v43')
        self.e('v_add_f32 v45, v45, v47')
        self.e('v_add_f32 v40, v40, v44')
        self.e('v_add_f32 v41, v41, v45')
        self.e(f'v_mul_f32 v40, {f2u(1.0 / 448):#x}, v40')
        self.e(f'v_mul_f32 v41, {f2u(1.0 / 448):#x}, v41')
        self.e('v_fma_f32 v41, -v40, v40, v41')
        self.e('v_max_f32 v41, 0, v41')
        self.e(f'v_add_f32 v41, {f2u(1e-5):#x}, v41')
        self.e('v_rsq_f32 v41, v41')
        self.e('s_nop 0')

    def pass_end(self):
        self.c('---- end of pass: combine waves and publish partial')
        self.wave_l_reduce()
        self.e('s_nop 7')
        self.e(f'v_and_b32 v{V_T}, 63, v{V_TID}')
        self.e(f'v_and_b32 v32, 15, v{V_T}')
        self.e(f'v_lshrrev_b32 v33, 4, v{V_T}')
        self.e('v_lshlrev_b32 v32, 5, v32')
        self.e('v_lshl_add_u32 v32, v33, 4, v32')
        self.e(f's_mul_i32 s57, s{S_W}, 1040')
        self.e(f's_add_u32 s57, s57, {COMB}')
        self.e('v_add_u32 v32, s57, v32')
        self.e(f'v_cmp_gt_u32 vcc, 32, v{V_T}')
        self.e('s_and_saveexec_b64 s[60:61], vcc')
        self.e(f'ds_write_b128 v32, v[{V_O}:{V_O + 3}]')
        self.e(f'ds_write_b128 v32, v[{V_O + 4}:{V_O + 7}] offset:512')
        self.e('s_mov_b64 exec, s[60:61]')
        self.e('v_mov_b32 v32, s57')
        self.e(f'v_mov_b32 v34, v{V_M}')
        self.e(f'v_mov_b32 v35, v{V_L}')
        self.e('ds_write_b64 v32, v[34:35] offset:1024')
        self.e('s_waitcnt lgkmcnt(0)')
        self.e('s_barrier')
        self.e(f'v_lshlrev_b32 v32, 2, v{V_TID}')
        self.e(f'v_mov_b32 v33, {COMB}')
        self.e(f'v_add_u32 v48, {COMB}, v32')
        for w in range(4):
            self.e(f'ds_read_b32 v{36 + w}, v48 offset:{1040 * w}')
            self.e(f'ds_read_b64 v[{40 + 2 * w}:{41 + 2 * w}], v33 offset:{1040 * w + 1024}')
        self.e('s_waitcnt lgkmcnt(0)')
        self.e('v_max_f32 v34, v40, v42')
        self.e('v_max3_f32 v34, v44, v46, v34')
        for w in range(4):
            self.e(f'v_sub_f32 v{40 + 2 * w}, v{40 + 2 * w}, v34')
            self.e(f'v_mul_f32 v{40 + 2 * w}, s{S_CS}, v{40 + 2 * w}')
            self.e(f'v_exp_f32 v{40 + 2 * w}, v{40 + 2 * w}')
        self.e('s_nop 0')
        self.e('v_mul_f32 v36, v36, v40')
        self.e('v_fmac_f32 v36, v37, v42')
        self.e('v_fmac_f32 v36, v38, v44')
        self.e('v_fmac_f32 v36, v39, v46')
        self.e('v_mul_f32 v35, v41, v40')
        self.e('v_fmac_f32 v35, v43, v42')
        self.e('v_fmac_f32 v35, v45, v44')
        self.e('v_fmac_f32 v35, v47, v46')
        self.e(f's_lshl_b32 s57, s{S_H}, 4')
        self.e(f's_add_u32 s57, s57, s{S_SI}')
        self.e(f's_mul_i32 s57, s57, {REC}')
        self.poff(63, PART0, 256 * REC)
        self.e('s_add_u32 s57, s57, s63')
        self.vm(f'buffer_store_dword v36, v32, {SRD_WS}, s57 offen sc1', 'pub')
        self.e(f'v_cmp_eq_u32 vcc, 0, v{V_TID}')
        self.e('s_and_saveexec_b64 s[60:61], vcc')
        zl = self.newlab('PZ')
        self.e(f's_cbranch_execz {zl}')
        self.e('v_mov_b32 v32, 1024')
        self.e(f'buffer_store_dwordx2 v[34:35], v32, {SRD_WS}, s57 offen sc1')
        self.lab(zl)
        self.e('s_mov_b64 exec, s[60:61]')
        self.e('s_barrier')

    def wave_l_reduce(self):
        v = V_L
        self.e('s_nop 1')
        self.e(f'v_add_f32_dpp v{v}, v{v}, v{v} row_ror:4 row_mask:0xf bank_mask:0xf')
        self.e('s_nop 1')
        self.e(f'v_add_f32_dpp v{v}, v{v}, v{v} row_ror:8 row_mask:0xf bank_mask:0xf')
        self.cross_row('add', v)

    def stage_s2(self, wbase):
        self.c('---- S2: combine head partials, o @ wo slice')
        skip = self.newlab('S2X')
        self.e(f's_cmp_ge_u32 s{S_SI}, 14')
        self.e(f's_cbranch_scc1 {skip}')
        self.e(f's_mul_i32 s57, s{S_H}, {16 * REC}')
        self.poff(46, PART0, 256 * REC)
        self.e('s_add_u32 s46, s46, s57')
        self.e(f'v_lshlrev_b32 v8, 2, v{V_TID}')
        self.e(f'v_and_b32 v9, 15, v{V_TID}')
        self.e(f'v_mul_u32_u24 v9, {REC}, v9')
        self.e('v_add_u32 v9, 1024, v9')

        def issue():
            for s in range(16):
                self.e(f's_add_u32 s57, s46, {s * REC}')
                self.e(f'buffer_load_dword v{32 + s}, v8, {SRD_WS}, s57 offen sc1')
            self.e(f'buffer_load_dwordx2 v[48:49], v9, {SRD_WS}, s46 offen sc1')
        if self.o['prepoll']:
            def issue0():
                self.e(f'buffer_load_dwordx2 v[48:49], v9, {SRD_WS}, s46 offen sc1')
            self.poll(issue0, [48, 49], 0, 'hop1pre', backoff=8)
        self.poll(issue, list(range(32, 50)), self.o['delays'][0], 'hop1')
        self.stamp('hop1 done', both=True)
        self.e('v_mov_b32 v50, v48')
        self.row_reduce('max', 50)
        self.e('v_sub_f32 v48, v48, v50')
        self.e(f'v_mul_f32 v48, s{S_CS}, v48')
        self.e('v_exp_f32 v48, v48')
        self.e('s_nop 0')
        self.e('v_mul_f32 v49, v49, v48')
        self.row_reduce('add', 49)
        self.e('v_rcp_f32 v49, v49')
        self.e('s_nop 0')
        self.e('v_mul_f32 v48, v48, v49')
        self.e('s_nop 1')
        self.e('v_mul_f32_dpp v50, v48, v32 row_newbcast:0 row_mask:0xf bank_mask:0xf')
        self.e('v_mul_f32_dpp v51, v48, v33 row_newbcast:1 row_mask:0xf bank_mask:0xf')
        for s in range(2, 16):
            self.e('s_nop 0')
            self.e(f'v_fmac_f32_dpp v{50 + (s & 1)}, v48, v{32 + s} row_newbcast:{s} row_mask:0xf bank_mask:0xf')
        self.e('v_add_f32 v50, v50, v51')
        self.e('v_cvt_pk_bf16_f32 v50, v50, v50')
        self.e(f'v_lshlrev_b32 v51, 1, v{V_TID}')
        self.e(f'v_add_u32 v51, {V0L}, v51')
        self.e(f'ds_write_b16 v51, v50')
        self.wait('wA')
        self.tr_addr(37, wbase, 64, 'full')
        self.e(f'v_and_b32 v36, 63, v{V_TID}')
        self.e('v_lshrrev_b32 v36, 4, v36')
        self.e('v_lshlrev_b32 v36, 4, v36')
        self.e(f's_lshl_b32 s57, s{S_W}, 7')
        self.e(f's_add_u32 s57, s57, {V0L}')
        self.e('v_add_u32 v36, s57, v36')
        self.e('s_waitcnt lgkmcnt(0)')
        self.e('ds_read_b128 v[40:43], v36')
        self.e('ds_read_b128 v[44:47], v36 offset:64')
        for i in range(2):
            for cb in range(2):
                r = 48 + (i * 2 + cb) * 4
                self.e(f'ds_read_b64_tr_b16 v[{r}:{r + 1}], v37 offset:{i * 32 * 64 + cb * 32}')
                self.e(f'ds_read_b64_tr_b16 v[{r + 2}:{r + 3}], v37 offset:{i * 32 * 64 + cb * 32 + 4 * 64}')
        self.e('s_waitcnt lgkmcnt(0)')
        self.e('v_mfma_f32_16x16x32_bf16 v[32:35], v[40:43], v[48:51], 0')
        self.e('v_mfma_f32_16x16x32_bf16 v[8:11], v[40:43], v[52:55], 0')
        self.e('v_mfma_f32_16x16x32_bf16 v[32:35], v[44:47], v[56:59], v[32:35]')
        self.e('v_mfma_f32_16x16x32_bf16 v[8:11], v[44:47], v[60:63], v[8:11]')
        self.e('s_nop 7')
        self.e('v_mov_b32 v33, v8')
        self.red_write()
        self.e('s_waitcnt lgkmcnt(0)')
        self.e('s_barrier')
        self.e(f's_cmp_lg_u32 s{S_W}, 0')
        self.e(f's_cbranch_scc1 {skip}')
        self.red_read()
        self.e(f'v_and_b32 v{V_T}, 63, v{V_TID}')
        self.e(f'v_cmp_gt_u32 vcc, 16, v{V_T}')
        self.e('s_nop 1')
        self.e('v_cndmask_b32 v32, v33, v32, vcc')
        self.e(f'v_cmp_gt_u32 vcc, 32, v{V_TID}')
        self.e('s_and_saveexec_b64 s[60:61], vcc')
        zl = self.newlab('YZ')
        self.e(f's_cbranch_execz {zl}')
        self.e(f's_mul_i32 s57, s{S_H}, 1792')
        self.e(f's_lshl_b32 s58, s{S_SI}, 7')
        self.e('s_add_u32 s57, s57, s58')
        self.poff(58, Y0, 16 * 1792)
        self.e('s_add_u32 s57, s57, s58')
        self.e(f'v_lshlrev_b32 v34, 2, v{V_TID}')
        self.e(f'buffer_store_dword v32, v34, {SRD_WS}, s57 offen sc1')
        self.lab(zl)
        self.e('s_mov_b64 exec, s[60:61]')
        self.lab(skip)

    def stage_s3(self, wbase):
        self.c('---- S3: x1, LN, gate/up, h')
        self.poff(46, Y0, 16 * 1792)
        self.e(f'v_min_u32 v8, 223, v{V_TID}')
        self.e('v_lshlrev_b32 v8, 3, v8')

        def issue():
            for h in range(16):
                self.e(f's_add_u32 s57, s46, {h * 1792}')
                self.e(f'buffer_load_dwordx2 v[{32 + 2 * h}:{33 + 2 * h}], v8, {SRD_WS}, s57 offen sc1')
        self.poll(issue, list(range(32, 64)), self.o['delays'][1], 'hop2')
        self.stamp('hop2 done', both=True)
        for st in (16, 8, 4, 2):
            for i in range(0, st, 2):
                self.e(f'v_add_f32 v{32 + i}, v{32 + i}, v{32 + i + st}')
                self.e(f'v_add_f32 v{33 + i}, v{33 + i}, v{33 + i + st}')
        self.x_update_and_stats(32, 33)
        skip = self.newlab('S3X')
        self.e('s_cmp_ge_u32 s2, 224')
        self.e(f's_cbranch_scc1 {skip}')
        self.wait('wB')
        self.gemv_x_stage(wbase, 16, 'two8', True)
        self.e('s_waitcnt lgkmcnt(0)')
        self.e('s_barrier')
        self.e(f's_cmp_lg_u32 s{S_W}, 0')
        self.e(f's_cbranch_scc1 {skip}')
        self.red_read()
        self.stats_read()
        self.e('v_fma_f32 v32, -v40, v33, v32')
        self.e('v_mul_f32 v32, v32, v41')
        self.rbf(32, 32)
        self.e('s_nop 1')
        self.e('v_mov_b32_dpp v33, v32 row_ror:8 row_mask:0xf bank_mask:0xf')
        self.e(f'v_mul_f32 v34, {f2u(-LOG2E):#x}, v32')
        self.e('v_exp_f32 v34, v34')
        self.e('s_nop 0')
        self.e('v_add_f32 v34, 1.0, v34')
        self.e('v_rcp_f32 v34, v34')
        self.e('s_nop 0')
        self.e('v_mul_f32 v34, v34, v32')
        self.rbf(34, 34)
        self.e('v_mul_f32 v34, v34, v33')
        self.e('s_nop 1')
        self.e('v_mov_b32_dpp v35, v34 quad_perm:[1,0,3,2] row_mask:0xf bank_mask:0xf')
        self.e('v_cvt_pk_bf16_f32 v34, v34, v35')
        self.e(f'v_and_b32 v35, 0xf9, v{V_TID}')
        self.e('v_cmp_eq_u32 vcc, 0, v35')
        self.e('s_and_saveexec_b64 s[60:61], vcc')
        zl = self.newlab('HZ')
        self.e(f's_cbranch_execz {zl}')
        self.e(f'v_lshlrev_b32 v35, 1, v{V_TID}')
        self.e('s_lshl_b32 s57, s2, 4')
        self.poff(58, H0, 3584)
        self.e('s_add_u32 s57, s57, s58')
        self.e(f'buffer_store_dword v34, v35, {SRD_WS}, s57 offen sc1')
        self.lab(zl)
        self.e('s_mov_b64 exec, s[60:61]')
        self.lab(skip)

    def stage_s4(self, p, wbase, tail):
        self.c(f'---- S4 (pass {p})')
        skip = self.newlab('S4X')
        self.e(f's_cmp_ge_u32 s2, {56 if tail else 224}')
        self.e(f's_cbranch_scc1 {skip}')
        nkb = 14 if tail else 4
        self.e(f'v_and_b32 v8, 63, v{V_TID}')
        self.e('v_lshrrev_b32 v8, 4, v8')
        self.e('v_lshlrev_b32 v8, 4, v8')
        if tail:
            self.e(f's_mul_i32 s46, s{S_W}, {448 * 2}')
        else:
            self.e('s_and_b32 s46, s2, 3')
            self.e(f's_mul_i32 s46, s46, {448 * 2}')
            self.e(f's_lshl_b32 s57, s{S_W}, 8')
            self.e('s_add_u32 s46, s46, s57')
        self.e(f's_add_u32 s46, s46, {H0 + p * 3584}')
        abase = 64 if tail else 48
        if not tail:
            self.e(f's_cmp_eq_u32 s{S_W}, 3')
            self.e('s_cselect_b32 s58, 0, 128')

        def issue():
            for kb in range(nkb):
                r = abase + 4 * kb
                if not tail and kb >= 2:
                    self.e(f's_add_u32 s57, s46, s58')
                    self.e(f'buffer_load_dwordx4 v[{r}:{r + 3}], v8, {SRD_WS}, s57 offen offset:{(kb - 2) * 64} sc1')
                else:
                    self.e(f'buffer_load_dwordx4 v[{r}:{r + 3}], v8, {SRD_WS}, s46 offen offset:{kb * 64} sc1')
        if tail:
            self.wait('wC')
        else:
            self.wait('wA2')
        self.poll(issue, list(range(abase, abase + 4 * nkb)), self.o['delays'][2], 'hop3a')
        self.stamp(f'hop3a done p{p}')
        self.tr_addr(37, wbase, 16, 'dup8')
        for i in range(4):
            self.e(f'v_mov_b32 v{32 + i}, 0')
        sk = self.newlab('GK')
        for kb in range(nkb):
            if not tail and kb == 2:
                self.e(f's_cmp_eq_u32 s{S_W}, 3')
                self.e(f's_cbranch_scc1 {sk}')
            r = abase + 4 * kb
            b = 40 + 4 * (kb & 1)
            self.e(f'ds_read_b64_tr_b16 v[{b}:{b + 1}], v37 offset:{kb * 512}')
            self.e(f'ds_read_b64_tr_b16 v[{b + 2}:{b + 3}], v37 offset:{kb * 512 + 64}')
            self.e('s_waitcnt lgkmcnt(0)')
            self.e(f'v_mfma_f32_16x16x32_bf16 v[32:35], v[{r}:{r + 3}], v[{b}:{b + 3}], v[32:35]')
        self.lab(sk)
        self.e('s_nop 7')
        self.red_write()
        self.e('s_waitcnt lgkmcnt(0)')
        self.e('s_barrier')
        self.e(f's_cmp_lg_u32 s{S_W}, 0')
        self.e(f's_cbranch_scc1 {skip}')
        self.red_read()
        if not tail:
            self.e(f'v_cmp_gt_u32 vcc, 8, v{V_TID}')
            self.e('s_and_saveexec_b64 s[60:61], vcc')
            zl = self.newlab('XZ')
            self.e(f's_cbranch_execz {zl}')
            self.e('s_and_b32 s57, s2, 3')
            self.e('s_mul_i32 s57, s57, 1792')
            self.e('s_lshr_b32 s58, s2, 2')
            self.e('s_lshl_b32 s58, s58, 5')
            self.e('s_add_u32 s57, s57, s58')
            self.e(f's_add_u32 s57, s57, {X2P0}')
            self.e(f'v_lshlrev_b32 v34, 2, v{V_TID}')
            self.e(f'buffer_store_dword v32, v34, {SRD_WS}, s57 offen sc1')
            self.lab(zl)
            self.e('s_mov_b64 exec, s[60:61]')
        else:
            self.rbf(32, 32)
            self.e(f'v_and_b32 v34, 7, v{V_TID}')
            self.e('v_lshlrev_b32 v34, 1, v34')
            self.e('s_lshl_b32 s57, s2, 4')
            self.e(f's_add_u32 s57, s57, {V0L}')
            self.e('v_add_u32 v34, s57, v34')
            self.e('ds_read_u16 v35, v34')
            self.e('s_waitcnt lgkmcnt(0)')
            self.e('v_lshlrev_b32 v35, 16, v35')
            self.e('v_add_f32 v32, v32, v35')
            self.e('s_nop 1')
            self.e('v_mov_b32_dpp v35, v32 quad_perm:[1,0,3,2] row_mask:0xf bank_mask:0xf')
            self.e('v_cvt_pk_bf16_f32 v32, v32, v35')
            self.e(f'v_and_b32 v35, 0xf9, v{V_TID}')
            self.e('v_cmp_eq_u32 vcc, 0, v35')
            self.e('s_and_saveexec_b64 s[60:61], vcc')
            zl = self.newlab('OZ')
            self.e(f's_cbranch_execz {zl}')
            self.srd(20, P_OUT, 896)
            self.e(f'v_lshlrev_b32 v35, 1, v{V_TID}')
            self.e('s_lshl_b32 s57, s2, 4')
            self.e(f'buffer_store_dword v32, v35, {SRD_T}, s57 offen')
            self.lab(zl)
            self.e('s_mov_b64 exec, s[60:61]')
        self.lab(skip)

    def stage_s5(self, wbase):
        self.c('---- S5: x2, LN, q2 slice')
        self.e(f'v_min_u32 v8, 223, v{V_TID}')
        self.e('v_lshlrev_b32 v8, 3, v8')

        def issue():
            for k in range(4):
                self.e(f's_mov_b32 s57, {X2P0 + k * 1792}')
                self.e(f'buffer_load_dwordx2 v[{32 + 2 * k}:{33 + 2 * k}], v8, {SRD_WS}, s57 offen sc1')
        self.poll(issue, list(range(32, 40)), self.o['delays'][3], 'hop3b')
        self.stamp('hop3b done')
        self.e('v_add_f32 v32, v32, v34')
        self.e('v_add_f32 v33, v33, v35')
        self.e('v_add_f32 v36, v36, v38')
        self.e('v_add_f32 v37, v37, v39')
        self.e('v_add_f32 v32, v32, v36')
        self.e('v_add_f32 v33, v33, v37')
        self.x_update_and_stats(32, 33)
        self.gemv_x_stage(wbase, 32, 'full', True)
        self.e('s_waitcnt lgkmcnt(0)')
        self.e('s_barrier')
        skip = self.newlab('S5X')
        self.e(f's_cmp_lg_u32 s{S_W}, 0')
        self.e(f's_cbranch_scc1 {skip}')
        self.red_read()
        self.stats_read()
        self.e('v_fma_f32 v32, -v40, v33, v32')
        self.e('v_mul_f32 v32, v32, v41')
        self.e('s_nop 1')
        self.e('v_mov_b32_dpp v33, v32 quad_perm:[1,0,3,2] row_mask:0xf bank_mask:0xf')
        self.e('v_cvt_pk_bf16_f32 v32, v32, v33')
        self.e(f'v_and_b32 v35, 0xf1, v{V_TID}')
        self.e('v_cmp_eq_u32 vcc, 0, v35')
        self.e('s_and_saveexec_b64 s[60:61], vcc')
        zl = self.newlab('QZ')
        self.e(f's_cbranch_execz {zl}')
        self.e(f's_lshl_b32 s57, s{S_H}, 9')
        self.e(f's_lshl_b32 s58, s{S_SI}, 5')
        self.e('s_add_u32 s57, s57, s58')
        self.e(f's_add_u32 s57, s57, {Q20}')
        self.e(f'v_lshlrev_b32 v35, 1, v{V_TID}')
        self.e(f'buffer_store_dword v32, v35, {SRD_WS}, s57 offen sc1')
        self.lab(zl)
        self.e('s_mov_b64 exec, s[60:61]')
        self.lab(skip)

    def qfrag_voff(self, v):
        self.e(f'v_and_b32 v{V_T}, 63, v{V_TID}')
        self.e(f'v_lshrrev_b32 v{v}, 4, v{V_T}')
        self.e(f'v_lshlrev_b32 v{v}, 2, v{v}')
        self.e(f'v_and_b32 v{V_T}, 3, v{V_T}')
        self.e(f'v_add_u32 v{v}, v{v}, v{V_T}')
        self.e(f'v_lshlrev_b32 v{v}, 4, v{v}')

    def stage_s6(self):
        self.c('---- S6: gather q2')
        self.qfrag_voff(32)
        self.e(f's_lshl_b32 s46, s{S_H}, 9')
        self.e(f's_add_u32 s46, s46, {Q20}')

        def issue():
            self.e(f'buffer_load_dwordx4 v[{V_QB}:{V_QB + 3}], v32, {SRD_WS}, s46 offen sc1')
            self.e(f'buffer_load_dwordx4 v[{V_QB + 4}:{V_QB + 7}], v32, {SRD_WS}, s46 offen offset:256 sc1')
        self.poll(issue, list(range(V_QB, V_QB + 8)), self.o['delays'][4], 'hop5')
        self.stamp('hop5 done')

    def step_job(self, ksrc, vsrc, ktag, vtag, nextK=None, nextV=None):
        if ktag:
            self.wait(ktag)
        self.qk_mfma(ksrc)
        pad = 8
        if nextK:
            n0 = len(self.lines)
            nextK()
            pad = max(0, 8 - (len(self.lines) - n0))
        self.reduce_softmax(pad)
        if vtag:
            self.wait(vtag)
        self.pv(vsrc)
        if nextV:
            nextV()

    def build(self):
        o = self.o
        nreg, nlds = o['nreg'], o['nlds']
        e = self.e
        self.lab(f'{NAME}_kernel')
        e('s_cmp_ge_u32 s2, 256')
        e('s_cbranch_scc1 END')
        e('s_load_dwordx16 s[64:79], s[0:1], 0')
        e('s_load_dwordx8 s[80:87], s[0:1], 64')
        e(f'v_lshrrev_b32 v1, 6, v{V_TID}')
        e('s_nop 0')
        e(f'v_readfirstlane_b32 s{S_W}, v1')
        e('s_lshr_b32 s57, s2, 6')
        e(f's_bfe_u32 s{S_VV}, s2, 0x30003')
        e('s_and_b32 s58, s2, 7')
        e(f's_lshr_b32 s{S_CLS}, s58, 2')
        if o['hmap'] == 4:
            e('s_bfe_u32 s57, s58, 0x10001')
            e(f's_lshr_b32 s{S_H}, s2, 5')
            e(f's_lshl_b32 s{S_H}, s{S_H}, 1')
            e(f's_add_u32 s{S_H}, s{S_H}, s57')
            e('s_and_b32 s57, s58, 1')
            e('s_lshl_b32 s57, s57, 2')
            e(f's_bfe_u32 s{S_VV}, s2, 0x20003')
            e(f's_add_u32 s{S_VV}, s{S_VV}, s57')
        elif o['hmap'] == 8:
            e(f's_lshr_b32 s{S_H}, s2, 4')
            e('s_bfe_u32 s57, s2, 0x10003')
            e('s_lshl_b32 s57, s57, 2')
            e(f's_and_b32 s{S_VV}, s2, 3')
            e(f's_add_u32 s{S_VV}, s{S_VV}, s57')
        else:
            if o['hmap'] == 1:
                e('s_add_u32 s58, s58, 1')
            e('s_and_b32 s58, s58, 3')
            e(f's_lshl_b32 s{S_H}, s57, 2')
            e(f's_add_u32 s{S_H}, s{S_H}, s58')
        e(f's_lshl_b32 s{S_SI}, s{S_CLS}, 3')
        e(f's_add_u32 s{S_SI}, s{S_SI}, s{S_VV}')
        e(f's_lshl_b32 s57, s{S_VV}, 2')
        e(f's_add_u32 s57, s57, s{S_W}')
        e('s_lshl_b32 s57, s57, 14')
        e(f's_lshl_b32 s58, s{S_CLS}, 13')
        e(f's_add_u32 s{S_PB0}, s57, s58')
        e('s_xor_b32 s58, s58, 8192')
        e(f's_add_u32 s{S_PB1}, s57, s58')
        if o['blind'] == 'wave':
            e(f's_lshl_b32 s57, s{S_SI}, 2')
            e(f's_add_u32 s57, s57, s{S_W}')
            e(f's_lshl_b32 s{S_PB0}, s57, 13')
        if o['p2local'] is not None:
            e(f's_lshl_b32 s57, s{S_VV}, 2')
            e(f's_add_u32 s57, s57, s{S_W}')
            e('s_lshl_b32 s57, s57, 14')
            e(f's_xor_b32 s58, s{S_CLS}, {o["p2local"]}')
            e('s_lshl_b32 s58, s58, 13')
            e('s_add_u32 s100, s57, s58')
            e('s_xor_b32 s58, s58, 8192')
            e('s_add_u32 s101, s57, s58')
        e(f's_lshl_b32 s{S_LB}, s{S_W}, 15')
        e(f's_mov_b32 s{S_CS}, {f2u(LOG2E / 16):#x}')
        e(f'v_and_b32 v30, 63, v{V_TID}')
        e('v_lshrrev_b32 v32, 4, v30')
        e('v_bfe_u32 v33, v30, 2, 2')
        e('v_and_b32 v34, 3, v30')
        e('v_and_b32 v35, 15, v30')
        e(f'v_lshlrev_b32 v{V_OK}, 9, v33')
        e(f'v_lshl_add_u32 v{V_OK}, v32, 6, v{V_OK}')
        e(f'v_lshl_add_u32 v{V_OK}, v34, 4, v{V_OK}')
        e(f'v_lshlrev_b32 v{V_OV}, 9, v32')
        e(f'v_lshl_add_u32 v{V_OV}, v35, 4, v{V_OV}')
        e(f'v_lshlrev_b32 v{V_LRD}, 4, v30')
        e(f'v_add_u32 v{V_LRD}, s{S_LB}, v{V_LRD}')
        e('v_and_b32 v36, 1, v35')
        e('v_cmp_eq_u32 vcc, 1, v36')
        e('v_mov_b32 v37, 0x0000ffff')
        e('v_mov_b32 v38, 0xffff0000')
        e('v_cndmask_b32 v36, v37, v38, vcc')
        e('v_lshrrev_b32 v37, 1, v35')
        for k in range(4):
            e(f'v_cmp_eq_u32 vcc, {k}, v37')
            e('s_nop 1')
            e(f'v_cndmask_b32 v{V_MASK + k}, 0, v36, vcc')
        e('s_getpc_b64 s[62:63]')
        self.lab('GPC0')
        e('s_add_u32 s48, s62, SLOW-GPC0')
        e('s_addc_u32 s49, s63, 0')
        e('s_waitcnt lgkmcnt(0)')
        for dst, src in ((P_X, 64), (P_WQ, 70), (P_WO, 72), (P_W1, 76), (P_W3, 78), (P_W2, 80), (P_OUT, 82), (P_DBG, 84)):
            e(f's_mov_b64 s[{dst}:{dst + 1}], s[{src}:{src + 1}]')
        e(f's_lshl_b32 s57, s{S_H}, 24')
        self.srd(8, 66, 1 << 24, add=57)
        self.srd(12, 68, 1 << 24, add=57)
        self.srd(16, 86, WS_BYTES)
        for reg, nm in ((S_A0, 'STEP0'), (S_A1, 'STEP1'), (S_AH, 'HELD'), (S_AM, 'MID')):
            e(f's_add_u32 s{reg}, s62, {nm}-GPC0')
            e(f's_addc_u32 s{reg + 1}, s63, 0')
        if o['codewarm']:
            self.c('pull the code into L2')
            e(f's_sub_u32 s20, s62, GPC0-{NAME}_kernel')
            e('s_subb_u32 s21, s63, 0')
            e('s_and_b32 s21, s21, 0xffff')
            e(f's_mov_b32 s22, CODE_END-{NAME}_kernel')
            e('s_mov_b32 s23, 0x20000')
            e(f'v_lshlrev_b32 v32, 7, v{V_TID}')
            self.vm(f'buffer_load_dword v33, v32, {SRD_T}, 0 offen', 'cw')
        if o['stamps']:
            for k in range(20):
                e(f's_mov_b32 s{80 + k}, 0')
            self.stamp('start')

        self.c('x loads')
        self.srd(20, P_X, 896)
        e(f'v_and_b32 v30, 63, v{V_TID}')
        e('v_lshlrev_b32 v36, 2, v30')
        for i in range(4):
            self.vm(f'buffer_load_dword v{40 + i}, v36, {SRD_T}, 0 offen offset:{256 * i}', 'x')
        e(f'v_lshlrev_b32 v36, 2, v{V_TID}')
        self.vm(f'buffer_load_dword v{V_XR}, v36, {SRD_T}, 0 offen', 'x')
        e('v_lshrrev_b32 v36, 4, v30')
        e('v_bfe_u32 v37, v30, 2, 2')
        e('v_lshl_add_u32 v36, v37, 2, v36')
        e(f's_mul_i32 s57, s{S_W}, 112')
        e('v_add_u32 v36, s57, v36')
        e('v_lshlrev_b32 v36, 1, v36')
        for i in range(7):
            self.vm(f'buffer_load_ushort v{48 + i}, v36, {SRD_T}, 0 offen offset:{32 * i}', 'x')

        held = []
        for s in range(nlds):
            held.append(('K', nreg + s, 'lds', 2 * s))
            held.append(('V', nreg + s, 'lds', 2 * s + 1))
        for s in range(nreg):
            held.append(('K', s, 'reg', 4 + 2 * s))
            held.append(('V', s, 'reg', 5 + 2 * s))
        hq = list(held)

        def issue_held(n):
            for _ in range(n):
                if not hq:
                    return
                k, s, where, idx = hq.pop(0)
                if where == 'reg':
                    self.load_tile_reg(k, s, idx, 'nt', 'held')
                else:
                    self.load_tile_lds(k, s, idx, 'nt', 'held')

        lq = [h for h in held if h[2] == 'lds']
        rq = {h[3]: h for h in held if h[2] == 'reg'}

        def issue_h(h):
            k, st, where, idx = h
            if where == 'reg':
                self.load_tile_reg(k, st, idx, 'nt', 'held')
            else:
                self.load_tile_lds(k, st, idx, 'nt', 'held')

        def issue_l():
            if lq:
                issue_h(lq.pop(0))

        def issue_r(ti):
            if ti in rq:
                issue_h(rq.pop(ti))

        def load_wq(i, ti):
            self.srd(20, P_WQ, 448 * 8192)
            e(f's_mul_i32 s46, s{S_W}, {7 * 16 * 8192}')
            e(f's_lshl_b32 s57, s{S_H}, 9')
            e('s_add_u32 s46, s46, s57')
            for t in range(4):
                e(f's_add_u32 s57, s46, {(16 * i + 4 * t) * 8192}')
                for half in range(2):
                    self.vm(f'buffer_load_dwordx4 {unit(ti, t, half)}, v55, {SRD_T}, s57 offen offset:{half * 256}', f'wq{i}')
        e('v_lshrrev_b32 v55, 4, v30')
        e('v_lshlrev_b32 v55, 13, v55')
        e('v_and_b32 v37, 15, v30')
        e('v_lshl_add_u32 v55, v37, 4, v55')
        for i in range(3):
            issue_l()
            load_wq(i, i)

        self.wait('x')
        self.c('LN(x)')
        for i in range(4):
            e(f'v_lshlrev_b32 v{56 + 2 * i}, 16, v{40 + i}')
            e(f'v_and_b32 v{57 + 2 * i}, 0xffff0000, v{40 + i}')
        e('v_add_f32 v44, v56, v57')
        for i in range(58, 64):
            e(f'v_add_f32 v44, v44, v{i}')
        self.wave_reduce('add', 44)
        e(f'v_mul_f32 v44, {f2u(1.0 / 448):#x}, v44')
        for i in range(56, 64):
            e(f'v_sub_f32 v{i}, v{i}, v44')
        e('v_cmp_gt_u32 vcc, 32, v30')
        e('s_nop 1')
        e('v_cndmask_b32 v62, 0, v62, vcc')
        e('v_cndmask_b32 v63, 0, v63, vcc')
        e('v_mul_f32 v45, v56, v56')
        for i in range(57, 64):
            e(f'v_fmac_f32 v45, v{i}, v{i}')
        self.wave_reduce('add', 45)
        e(f'v_mul_f32 v45, {f2u(1.0 / 448):#x}, v45')
        self.ln_finish(44, 45)
        for i in range(7):
            e(f'v_lshlrev_b32 v{48 + i}, 16, v{48 + i}')
            self.ln_apply(48 + i)
            e(f'v_cvt_pk_bf16_f32 v{48 + i}, v{48 + i}, v{48 + i}')
        if o['fine'] == 'start':
            self.stamp('LN done')
        for i in range(8):
            e(f'v_mov_b32 v{V_O + i}, 0')
        nh = nreg + nlds
        stream = list(range(nh, 32))
        reread = stream[:-2]

        def pol1(step):
            if step not in reread:
                return 'nt'
            i = reread.index(step)
            m = o['mall']
            if m == 'none':
                return 'nt'
            if m == 'all':
                return ''
            if m == 'ddn':
                return '' if i % 3 != 2 else 'nt'
            if m == 'dn':
                return '' if i % 2 == 0 else 'nt'
            if m == 'tail15':
                return '' if i >= len(reread) - 15 else 'nt'
            raise ValueError(m)
        first_slot = 0
        ringq = [('K', stream[0], 0), ('V', stream[0], 1), ('K', stream[1], 2), ('V', stream[1], 3)]
        issue_l()
        load_wq(3, 3)
        late = [t for t in range(7, 14)]
        for i in range(7):
            self.wait(f'wq{i}')
            self.pv(('reg', i), ppk=48 + i)
            if o['fine'] == 'start' and i in (0, 3, 6):
                self.stamp(f'wq job {i}')
            issue_r(late.pop(0))
            if i + 4 < 7:
                load_wq(i + 4, i + 4)
            if i >= 3:
                k, st, ti = ringq.pop(0)
                self.load_tile_reg(k, st, ti, pol1(st), 'ring')
        self.clears()
        for ti in (4, 5, 6):
            issue_r(ti)
        assert not rq and not lq and not ringq
        self.c('q1 finalize')
        e('s_nop 7')
        e(f'v_and_b32 v{V_T}, 63, v{V_TID}')
        e(f'v_and_b32 v32, 15, v{V_T}')
        e(f'v_lshrrev_b32 v33, 4, v{V_T}')
        e('v_lshlrev_b32 v32, 5, v32')
        e('v_lshl_add_u32 v32, v33, 4, v32')
        e(f's_mul_i32 s57, s{S_W}, 1040')
        e(f's_add_u32 s57, s57, {COMB}')
        e('v_add_u32 v32, s57, v32')
        e(f'v_cmp_gt_u32 vcc, 32, v{V_T}')
        e('s_and_saveexec_b64 s[60:61], vcc')
        e(f'ds_write_b128 v32, v[{V_O}:{V_O + 3}]')
        e(f'ds_write_b128 v32, v[{V_O + 4}:{V_O + 7}] offset:512')
        e('s_mov_b64 exec, s[60:61]')
        e('s_waitcnt lgkmcnt(0)')
        e('s_barrier')
        e(f'v_lshlrev_b32 v32, 2, v{V_TID}')
        e(f'v_add_u32 v32, {COMB}, v32')
        for w in range(4):
            e(f'ds_read_b32 v{36 + w}, v32 offset:{1040 * w}')
        e('s_waitcnt lgkmcnt(0)')
        e('v_add_f32 v36, v36, v37')
        e('v_add_f32 v38, v38, v39')
        e('v_add_f32 v36, v36, v38')
        e('v_cvt_pk_bf16_f32 v36, v36, v36')
        e(f'v_lshlrev_b32 v32, 1, v{V_TID}')
        e(f'v_add_u32 v32, {V0L}, v32')
        e(f'ds_write_b16 v32, v36')
        e('s_waitcnt lgkmcnt(0)')
        e('s_barrier')
        self.qfrag_voff(32)
        e(f'v_add_u32 v32, {V0L}, v32')
        e(f'ds_read_b128 v[{V_QB}:{V_QB + 3}], v32')
        e(f'ds_read_b128 v[{V_QB + 4}:{V_QB + 7}], v32 offset:256')
        e('s_waitcnt lgkmcnt(0)')
        self.stamp('q1 ready')
        if o['dump']:
            self.dump_q(0)
        self.load_w_s2(('spare', WA), 'wA')
        self.init_softmax()
        mask = 0
        for st in range(32):
            if pol1(st) == '':
                mask |= 1 << st
        e(f's_mov_b32 s{S_MK}, {mask:#x}')
        e(f's_mov_b32 s{S_MV}, {mask:#x}')
        e(f's_mov_b32 s{S_NX}, {stream[2]}')
        e(f's_mov_b32 s{S_END}, 32')
        e(f's_mov_b32 s{S_P}, 0')
        self.wait('held')
        self.stamp('held loaded')
        e('s_barrier')
        skb = self.newlab('AT')
        e(f's_cmp_lg_u32 s{S_W}, 0')
        e(f's_cbranch_scc1 {skb}')
        e(f'v_cmp_eq_u32 vcc, 0, v{V_TID}')
        e('s_and_saveexec_b64 s[60:61], vcc')
        e('v_mov_b32 v46, 0')
        e('v_mov_b32 v47, 1')
        e(f'global_atomic_add v46, v47, s[{P_DBG}:{P_DBG + 1}] sc1')
        e('s_mov_b64 exec, s[60:61]')
        self.lab(skb)
        self.call('HELD')
        self.stamp('held done p1')
        self.ring_run(len(stream), first_slot)
        self.vmq = []
        last_slot = (first_slot + len(stream) - 1) & 1
        self.stamp('pass1 done')
        self.check_cleared()
        self.call('MID')
        if o['dump']:
            self.dump_q(1)

        self.init_softmax()
        e(f's_mov_b32 s{S_MK}, {0 if o["p2pol"] == "nt" else -1}')
        e(f's_mov_b32 s{S_MV}, {0 if o["p2pol"] == "nt" else -1}')
        e(f's_mov_b32 s{S_NX}, {reread[0]}')
        e(f's_mov_b32 s{S_END}, {reread[-1] + 1}')
        e(f's_mov_b32 s{S_P}, 1')
        self.call(f'STEP{last_slot}')
        self.call(f'STEP{last_slot ^ 1}')
        self.call('HELD')
        self.vmq = ['ring'] * 32
        self.load_w_s2(('own', 0), 'wA')
        self.load_w_s3(('own', 4096), 'wB')
        self.load_w_s4tail(('own', 8192), 'wC')
        self.stamp('held done p2')
        self.ring_run(len(reread), last_slot)
        self.vmq = []
        self.stamp('pass2 done')
        self.call('MID')
        e('s_endpgm')

        self.lab('MID')
        self.pass_end()
        l1 = self.newlab('MW')
        e(f's_cmp_lg_u32 s{S_P}, 0')
        e(f's_cbranch_scc1 {l1}')
        self.load_w_s3(('spare', WB), 'wB')
        self.lab(l1)
        self.stage_s2(('p', (WA, 0)))
        l2 = self.newlab('MW')
        e(f's_cmp_lg_u32 s{S_P}, 0')
        e(f's_cbranch_scc0 {l2}')
        e('s_cmp_ge_u32 s2, 224')
        e('s_cbranch_scc1 FIN')
        l3 = self.newlab('MW')
        e(f's_branch {l3}')
        self.lab(l2)
        self.load_w_s4mid(('spare', WA), 'wA2')
        self.lab(l3)
        self.stage_s3(('p', (WB, 4096)))
        e(f's_cmp_lg_u32 s{S_P}, 0')
        e('s_cbranch_scc1 TAIL4')
        self.load_w_s5(('spare', WB), 'wB2')
        self.stage_s4(0, ('spare', WA), False)
        self.stage_s5(('spare', WB))
        self.stage_s6()
        e(f's_setpc_b64 s[{S_RET}:{S_RET + 1}]')
        self.lab('TAIL4')
        self.stage_s4(1, ('own', 8192), True)
        self.lab('FIN')
        self.stamp('end')
        if o['stamps']:
            self.write_stamps()
        self.lab('END')
        e('s_endpgm')
        self.slow_routine()
        self.step_routine(0)
        self.step_routine(1)
        self.held_routine()
        self.lab('CODE_END')

    def clears(self):
        e = self.e
        self.c('clear hand-off slots')
        e('v_mov_b32 v32, -1')
        e('v_mov_b32 v33, -1')
        e(f'v_lshlrev_b32 v34, 2, v{V_TID}')
        e(f's_lshl_b32 s46, s{S_H}, 4')
        e(f's_add_u32 s46, s46, s{S_SI}')
        e(f's_mul_i32 s46, s46, {REC}')
        for p in range(2):
            e(f's_add_u32 s57, s46, {PART0 + p * 256 * REC}')
            self.vm(f'buffer_store_dword v32, v34, {SRD_WS}, s57 offen sc1', 'clr')
        skc = self.newlab('CL')
        e(f's_cmp_lg_u32 s{S_W}, 0')
        e(f's_cbranch_scc1 {skc}')
        e(f'v_cmp_gt_u32 vcc, 2, v{V_TID}')
        e('s_and_saveexec_b64 s[60:61], vcc')
        for p in range(2):
            e(f's_add_u32 s57, s46, {PART0 + p * 256 * REC + 1024}')
            e(f'buffer_store_dword v32, v34, {SRD_WS}, s57 offen sc1')
        e('s_mov_b64 exec, s[60:61]')
        e(f'v_cmp_gt_u32 vcc, 32, v{V_TID}')
        e('s_and_saveexec_b64 s[60:61], vcc')
        e(f's_mul_i32 s57, s{S_H}, 1792')
        e(f's_min_u32 s58, s{S_SI}, 13')
        e('s_lshl_b32 s58, s58, 7')
        e('s_add_u32 s58, s58, s57')
        for p in range(2):
            e(f's_add_u32 s57, s58, {Y0 + p * 16 * 1792}')
            e(f'buffer_store_dword v32, v34, {SRD_WS}, s57 offen sc1')
        e('s_mov_b64 exec, s[60:61]')
        e(f'v_cmp_gt_u32 vcc, 4, v{V_TID}')
        e('s_and_saveexec_b64 s[60:61], vcc')
        e('s_min_u32 s58, s2, 223')
        e('s_lshl_b32 s58, s58, 4')
        for p in range(2):
            e(f's_add_u32 s57, s58, {H0 + p * 3584}')
            e(f'buffer_store_dword v32, v34, {SRD_WS}, s57 offen sc1')
        e('s_mov_b64 exec, s[60:61]')
        e(f'v_cmp_gt_u32 vcc, 8, v{V_TID}')
        e('s_and_saveexec_b64 s[60:61], vcc')
        e('s_min_u32 s58, s2, 223')
        e('s_and_b32 s57, s58, 3')
        e('s_mul_i32 s57, s57, 1792')
        e('s_lshr_b32 s58, s58, 2')
        e('s_lshl_b32 s58, s58, 5')
        e('s_add_u32 s57, s57, s58')
        e(f's_add_u32 s57, s57, {X2P0}')
        e(f'buffer_store_dword v32, v34, {SRD_WS}, s57 offen sc1')
        e(f's_lshl_b32 s57, s{S_H}, 9')
        e(f's_lshl_b32 s58, s{S_SI}, 5')
        e('s_add_u32 s57, s57, s58')
        e(f's_add_u32 s57, s57, {Q20}')
        e(f'buffer_store_dword v32, v34, {SRD_WS}, s57 offen sc1')
        e('s_mov_b64 exec, s[60:61]')
        self.lab(skc)


    def ln_finish(self, vm, vv):
        self.rbf(vm, vm)
        self.rbf(vv, vv)
        self.e(f'v_add_f32 v{vv}, {f2u(1e-5):#x}, v{vv}')
        self.rbf(vv, vv)
        self.e(f'v_sqrt_f32 v{vv}, v{vv}')
        self.e('s_nop 0')
        self.rbf(vv, vv)
        self.e(f'v_rcp_f32 v{vv}, v{vv}')
        self.e('s_nop 0')
        self._lnm, self._lnv = vm, vv

    def ln_apply(self, v):
        self.e(f'v_sub_f32 v{v}, v{v}, v{self._lnm}')
        self.rbf(v, v)
        self.e(f'v_mul_f32 v{v}, v{v}, v{self._lnv}')

    def wait_conditional_drain(self):
        pass

    def check_cleared(self):
        self.c('all workgroups have cleared their slots')
        lp = self.newlab('CC')
        dn = self.newlab('CD')
        e = self.e
        e(f's_mov_b32 s{S_SPIN}, 0')
        e('v_mov_b32 v32, 0')
        self.lab(lp)
        e(f'global_load_dword v33, v32, s[{P_DBG}:{P_DBG + 1}] sc1')
        e('s_waitcnt vmcnt(0)')
        e('v_cmp_gt_u32 vcc, 0x100, v33')
        e(f's_cbranch_vccz {dn}')
        e(f's_add_u32 s{S_SPIN}, s{S_SPIN}, 1')
        e(f's_cmp_lt_u32 s{S_SPIN}, {self.o["spin"]}')
        e('s_sleep 2')
        e(f's_cbranch_scc1 {lp}')
        self.lab(dn)
        self.vmq = []

    def dump_q(self, k):
        e = self.e
        sk = self.newlab('DQ')
        e(f's_or_b32 s57, s{S_SI}, s{S_W}')
        e('s_cmp_lg_u32 s57, 0')
        e(f's_cbranch_scc1 {sk}')
        e(f's_lshl_b32 s57, s{S_H}, 11')
        e(f's_add_u32 s57, s57, {DUMP0 + k * 32768}')
        e(f'v_lshlrev_b32 v32, 5, v{V_TID}')
        e(f'buffer_store_dwordx4 v[{V_QB}:{V_QB + 3}], v32, {SRD_WS}, s57 offen')
        e(f'buffer_store_dwordx4 v[{V_QB + 4}:{V_QB + 7}], v32, {SRD_WS}, s57 offen offset:16')
        e('s_waitcnt vmcnt(0)')
        self.lab(sk)
        self.vmq = []

    def write_stamps(self):
        e = self.e
        sk = self.newlab('WS')
        e(f's_cmp_lg_u32 s{S_W}, 0')
        e(f's_cbranch_scc1 {sk}')
        e(f'v_cmp_eq_u32 vcc, 0, v{V_TID}')
        e('s_and_saveexec_b64 s[60:61], vcc')
        e('s_lshl_b32 s57, s2, 7')
        e(f's_add_u32 s57, s57, {STAMP0}')
        e('v_mov_b32 v34, 0')
        for k in range(self.nstamp):
            e(f'v_mov_b32 v32, s{80 + k}')
            e(f'buffer_store_dword v32, v34, {SRD_WS}, s57 offen offset:{4 * k}')
            e('s_nop 1')
        e('s_waitcnt vmcnt(0)')
        e('s_mov_b64 exec, s[60:61]')
        self.lab(sk)

    def text(self):
        hdr = open('cdna_kernels/' + NAME + '.s.ref').read().split('; Override launch')[0]
        out = [hdr.rstrip('\n')]
        out.append(f'; @launch grid=(256,1,1) block=(256,1,1) lds={LDS_BYTES}')
        out.append('.amdgcn_target "amdgcn-amd-amdhsa--gfx950"')
        out.append('.text')
        out.append(f'.globl {NAME}_kernel')
        out.append('.p2align 8')
        out.append(f'.type {NAME}_kernel,@function')
        out += self.lines
        out.append('.section .rodata,"a"')
        out.append('.p2align 6')
        out.append(f'.amdhsa_kernel {NAME}_kernel')
        out.append('  .amdhsa_next_free_vgpr 512')
        out.append('  .amdhsa_next_free_sgpr 102')
        out.append('  .amdhsa_accum_offset 256')
        out.append('  .amdhsa_group_segment_fixed_size 0')
        out.append('  .amdhsa_kernarg_size 96')
        out.append('  .amdhsa_user_sgpr_count 2')
        out.append('  .amdhsa_user_sgpr_kernarg_segment_ptr 1')
        out.append('  .amdhsa_system_sgpr_workgroup_id_x 1')
        out.append('  .amdhsa_float_denorm_mode_32 3')
        out.append('.end_amdhsa_kernel')
        return '\n'.join(out) + '\n'


def generate(path, **kw):
    opt = dict(OPT)
    opt.update(kw)
    g = Gen(opt)
    g.build()
    open(path, 'w').write(g.text())
    return g


if __name__ == '__main__':
    path = sys.argv[1]
    kw = json.loads(sys.argv[2]) if len(sys.argv) > 2 else {}
    g = generate(path, **kw)
    print('lines', len(g.lines), 'stamps', g.nstamp, g.stamp_names)
    json.dump(dict(stamps=g.stamp_names), open(path + '.json', 'w'))
```
